```python
import torch

def _softmax(x, axis=-1):
    return torch.softmax(x, dim=axis)
def _gelu(x):
    return torch.nn.functional.gelu(x, approximate="tanh")
def _silu(x):
    return torch.nn.functional.silu(x)
def _sigmoid(x):
    return torch.sigmoid(x)
def _layernorm(x, axis=-1, eps=1e-5):
    m = x.mean(dim=axis, keepdim=True)
    v = x.var(dim=axis, keepdim=True, unbiased=False)
    return (x - m) / torch.sqrt(v + eps)
def _scatter_add(tgt, idx, src, axis=0):
    return tgt.clone().index_add_(axis, idx, src)
def _segment_sum(src, seg, n):
    out = torch.zeros((n,) + src.shape[1:], dtype=src.dtype)
    return out.index_add_(0, seg, src)
def _pad(x, pw):
    flat = tuple(v for pair in reversed(pw) for v in pair)
    return torch.nn.functional.pad(x, flat)

kernel_name = 'gated_mix__softmax_full_mha__dense_activation_squared_relu__prompt'

def setup_inputs():

    _w = (lambda a: (lambda t: t.to(torch.bfloat16) if t.is_floating_point() else t)(torch.as_tensor(a)))
    def _A_setup():
        B, S, D = 1, 2048, 512
        return {
            "x": _w((lambda *s: torch.randn(*s, dtype=torch.bfloat16) * 0.05)(B, S, D)),
            "wqkv": _w((lambda *s: torch.randn(*s, dtype=torch.bfloat16) * 0.8)(D, 3 * D)),
            "wo": _w((lambda *s: torch.randn(*s, dtype=torch.bfloat16) * 0.1)(D, D)),
        }
    _A_in = _A_setup()

    def _B_setup():
        B, S, D, F = 1, 2048, 512, 1792
        return {
            "x": _w((lambda *s: torch.randn(*s, dtype=torch.bfloat16) * 0.05)(B, S, D)),
            "w1": _w((lambda *s: torch.randn(*s, dtype=torch.bfloat16) * 0.1)(D, F)),
            "b1": _w((lambda *s: torch.randn(*s, dtype=torch.bfloat16) * 0.05)(F)),
            "w2": _w((lambda *s: torch.randn(*s, dtype=torch.bfloat16) * 0.05)(F, D)),
            "b2": _w((lambda *s: torch.randn(*s, dtype=torch.bfloat16) * 0.05)(D)),
        }
    _B_in = _B_setup()

    return {
        "A_x": _A_in["x"],
        "A_wqkv": _A_in["wqkv"],
        "A_wo": _A_in["wo"],
        "B_x": _B_in["x"],
        "B_w1": _B_in["w1"],
        "B_b1": _B_in["b1"],
        "B_w2": _B_in["w2"],
        "B_b2": _B_in["b2"],
        "gate_w": _w((lambda *s: torch.randn(*s, dtype=torch.bfloat16) * 0.05)(512) * 16.0),
    }

def reference(A_x, A_wqkv, A_wo, B_x, B_w1, B_b1, B_w2, B_b2, gate_w):
    def _A_ref(x, wqkv, wo):
        B, S, D = x.shape
        H = 32; Dh = D // H
        qkv = (lambda x, *d: x.permute(*d))((x @ wqkv).reshape(B, S, 3, H, Dh), 2, 0, 3, 1, 4)
        q, k, v = qkv[0], qkv[1], qkv[2]
        scale = Dh ** -0.5
        scores = torch.einsum("bhqd,bhkd->bhqk", q, k) * scale
        p = _softmax(scores, axis=-1)
        o = torch.einsum("bhqk,bhkd->bhqd", p, v)
        return (lambda x, *d: x.permute(*d))(o, 0, 2, 1, 3).reshape(B, S, D) @ wo

    def _B_ref(x, w1, b1, w2, b2):
        h = torch.einsum("bsd,df->bsf", x, w1) + b1
        zero = torch.zeros_like(h)
        r = torch.where(h > zero, h, zero)
        h = r * r
        out = torch.einsum("bsf,fd->bsd", h, w2) + b2
        return out

    x = A_x
    g = _sigmoid((x * gate_w).sum(-1, keepdims=True))
    a = _A_ref(x, A_wqkv, A_wo)
    b = _B_ref(x, B_w1, B_b1, B_w2, B_b2)
    return g * a + (1 - g) * b
```

```python
HEADER = '.amdgcn_target "amdgcn-amd-amdhsa--gfx950"\n.text\n'

def kernel_begin(name):
    return f".globl {name}\n.p2align 8\n.type {name},@function\n{name}:\n"

def kernel_descriptor(name, vgpr, sgpr=102, accum=None, wgid_y=False, kernarg=96):
    if accum is None:
        accum = ((vgpr + 3)//4)*4
    s = f""".section .rodata,"a"
.p2align 6
.amdhsa_kernel {name}
  .amdhsa_next_free_vgpr {vgpr}
  .amdhsa_next_free_sgpr {sgpr}
  .amdhsa_accum_offset {accum}
  .amdhsa_group_segment_fixed_size 0
  .amdhsa_kernarg_size {kernarg}
  .amdhsa_user_sgpr_count 2
  .amdhsa_user_sgpr_kernarg_segment_ptr 1
  .amdhsa_system_sgpr_workgroup_id_x 1
"""
    if wgid_y:
        s += "  .amdhsa_system_sgpr_workgroup_id_y 1\n"
    s += ".end_amdhsa_kernel\n.text\n"
    return s

def metadata(kernels, kernarg=96):
    s = ".amdgpu_metadata\n---\namdhsa.version: [1, 2]\namdhsa.kernels:\n"
    for (n, v, sg, wg) in kernels:
        s += f"""  - .name: {n}
    .symbol: {n}.kd
    .kernarg_segment_size: {kernarg}
    .kernarg_segment_align: 8
    .group_segment_fixed_size: 0
    .private_segment_fixed_size: 0
    .wavefront_size: 64
    .sgpr_count: {sg}
    .vgpr_count: {v}
    .max_flat_workgroup_size: {wg}
    .args:
      - {{.name: kernargs, .size: {kernarg}, .offset: 0, .value_kind: by_value}}
"""
    s += "...\n.end_amdgpu_metadata\n"
    return s

def srd(dst, base_lo, nbytes):
    return (f"    s_mov_b32 s{dst}, s{base_lo}\n"
            f"    s_and_b32 s{dst+1}, s{base_lo+1}, 0xffff\n"
            f"    s_mov_b32 s{dst+2}, {nbytes}\n"
            f"    s_mov_b32 s{dst+3}, 0x00020000\n")
```

```python
from layouts import *

class E:
    def __init__(self): self.l = []
    def __call__(self, s): self.l.append("    " + s)
    def label(self, s): self.l.append(s + ":")
    def raw(self, s): self.l.append(s)
    def text(self): return "\n".join(self.l) + "\n"

NTILE = 208
NAUX = 32
K1_GRID = NTILE + NAUX
K1_LDS = 98304
BUF = 49152


def gen_aux(e, L, s_wave):
    sX, sWS, sGW, sWT = 8, 16, 12, 20
    s_gw, s_row, s_t, s_fb, s_KS, s_magic, s_nbat, s_dst = 31, 32, 33, 34, 35, 36, 37, 43
    s_a, s_b = 38, 39
    e("s_load_dwordx2 s[46:47], s[0:1], 64")
    e("s_load_dwordx2 s[48:49], s[0:1], 48")
    e("s_load_dwordx2 s[50:51], s[0:1], 16")
    e(f"s_sub_u32 s{s_gw}, s2, {NTILE}")
    e(f"s_lshl_b32 s{s_gw}, s{s_gw}, 3")
    e(f"s_add_u32 s{s_gw}, s{s_gw}, s{s_wave}")
    e(f"s_mov_b32 s{sX}, s4"); e(f"s_and_b32 s{sX+1}, s5, 0xffff"); e(f"s_mov_b32 s{sX+2}, {S*D*2}"); e(f"s_mov_b32 s{sX+3}, 0x20000")
    e(f"s_mov_b32 s{sWS}, s28"); e(f"s_and_b32 s{sWS+1}, s29, 0xffff"); e(f"s_mov_b32 s{sWS+2}, {WS_SIZE}"); e(f"s_mov_b32 s{sWS+3}, 0x20000")
    e("s_waitcnt lgkmcnt(0)")
    e(f"s_mov_b32 s{sGW}, s46"); e(f"s_and_b32 s{sGW+1}, s47, 0xffff"); e(f"s_mov_b32 s{sGW+2}, 1024"); e(f"s_mov_b32 s{sGW+3}, 0x20000")
    e(f"s_cmp_lt_u32 s{s_gw}, 224")
    e(f"s_cbranch_scc1 {L}_aux_w2")
    e(f"s_mov_b32 s{sWT}, s50"); e(f"s_and_b32 s{sWT+1}, s51, 0xffff"); e(f"s_mov_b32 s{sWT+2}, {512*512*2}")
    e(f"s_sub_u32 s{s_fb}, s{s_gw}, 224")
    e(f"s_lshl_b32 s{s_fb}, s{s_fb}, 4")
    e(f"s_mov_b32 s{s_KS}, 32"); e(f"s_mov_b32 s{s_magic}, {1<<27}"); e(f"s_mov_b32 s{s_nbat}, 2"); e(f"s_mov_b32 s{s_dst}, 1792")
    e(f"s_branch {L}_aux_wsel")
    e.label(f"{L}_aux_w2")
    e(f"s_mov_b32 s{sWT}, s48"); e(f"s_and_b32 s{sWT+1}, s49, 0xffff"); e(f"s_mov_b32 s{sWT+2}, {1792*512*2}")
    e(f"s_lshl_b32 s{s_fb}, s{s_gw}, 3")
    e(f"s_mov_b32 s{s_KS}, 112"); e(f"s_mov_b32 s{s_magic}, {(2**32 + 111)//112}"); e(f"s_mov_b32 s{s_nbat}, 1"); e(f"s_mov_b32 s{s_dst}, 0")
    e.label(f"{L}_aux_wsel")
    e(f"s_mov_b32 s{sWT+3}, 0x20000")
    e("v_lshrrev_b32 v2, 5, v1")
    e("v_lshlrev_b32 v2, 12, v2")
    e("v_and_b32 v3, 31, v1")
    e("v_lshl_add_u32 v2, v3, 1, v2")
    e("v_add_u32 v3, 8192, v2")
    e("v_lshlrev_b32 v4, 4, v1")
    FR = 64
    e.label(f"{L}_aux_batch")
    for t in range(8):
        e(f"s_add_u32 s{s_a}, s{s_fb}, {t}")
        e(f"s_mul_hi_u32 s{s_b}, s{s_a}, s{s_magic}")
        e(f"s_mul_i32 s{s_t}, s{s_b}, s{s_KS}")
        e(f"s_sub_u32 s{s_t}, s{s_a}, s{s_t}")
        e(f"s_lshl_b32 s{s_t}, s{s_t}, 14")
        e(f"s_lshl_b32 s{s_b}, s{s_b}, 6")
        e(f"s_add_u32 s{s_t}, s{s_t}, s{s_b}")
        for j in range(8):
            vo = 2 if (j >> 2) == 0 else 3
            d = FR + t*8 + (j & 1)*4 + (j >> 1)
            e(f"buffer_load_ushort v{d}, v{vo}, s[{sWT}:{sWT+3}], s{s_t} offen offset:{(j&3)*1024}")
    e("s_waitcnt vmcnt(0)")
    for t in range(8):
        for p in range(4):
            e(f"v_lshl_or_b32 v{FR+t*8+p}, v{FR+t*8+4+p}, 16, v{FR+t*8+p}")
    for t in range(8):
        e(f"s_add_u32 s{s_a}, s{s_fb}, s{s_dst}")
        e(f"s_add_u32 s{s_a}, s{s_a}, {t}")
        e(f"s_lshl_b32 s{s_a}, s{s_a}, 10")
        e(f"s_add_u32 s{s_a}, s{s_a}, {WS_W2F}")
        e(f"buffer_store_dwordx4 v[{FR+t*8}:{FR+t*8+3}], v4, s[{sWS}:{sWS+3}], s{s_a} offen")
    e(f"s_add_u32 s{s_fb}, s{s_fb}, 8")
    e(f"s_sub_u32 s{s_nbat}, s{s_nbat}, 1")
    e(f"s_cmp_lg_u32 s{s_nbat}, 0")
    e("s_waitcnt vmcnt(0)")
    e(f"s_cbranch_scc1 {L}_aux_batch")
    e(f"buffer_load_dwordx4 v[8:11], v4, s[{sGW}:{sGW+3}], 0 offen")
    e(f"s_lshl_b32 s{s_row}, s{s_gw}, 13")
    e(f"s_add_u32 s{s_a}, s{s_row}, 4096")
    XR = 32
    for r in range(8):
        so = s_row if r < 4 else s_a
        e(f"buffer_load_dwordx4 v[{XR+4*r}:{XR+4*r+3}], v4, s[{sX}:{sX+3}], s{so} offen offset:{(r&3)*1024}")
    e("s_waitcnt vmcnt(0)")
    GL = 12
    for p in range(4):
        e(f"v_lshlrev_b32 v{GL+2*p}, 16, v{8+p}")
        e(f"v_and_b32 v{GL+2*p+1}, 0xffff0000, v{8+p}")
    SUM = 20
    for r in range(8):
        e(f"v_mov_b32 v{SUM+r}, 0")
        for p in range(4):
            x = XR+4*r+p
            e(f"v_lshlrev_b32 v5, 16, v{x}")
            e(f"v_and_b32 v6, 0xffff0000, v{x}")
            e(f"v_mul_f32 v5, v5, v{GL+2*p}")
            e(f"v_mul_f32 v6, v6, v{GL+2*p+1}")
            e(f"v_cvt_pk_bf16_f32 v7, v5, v6")
            e(f"v_lshlrev_b32 v5, 16, v7")
            e(f"v_and_b32 v6, 0xffff0000, v7")
            e(f"v_add_f32 v{SUM+r}, v{SUM+r}, v5")
            e(f"v_add_f32 v{SUM+r}, v{SUM+r}, v6")
    for sw in [0x041F, 0x081F, 0x101F, 0x201F, 0x401F]:
        for r in range(8):
            e(f"ds_swizzle_b32 v{XR+r}, v{SUM+r} offset:{sw}")
        e("s_waitcnt lgkmcnt(0)")
        for r in range(8):
            e(f"v_add_f32 v{SUM+r}, v{SUM+r}, v{XR+r}")
    e("v_mov_b32 v5, 0")
    e("v_mov_b32 v6, 0")
    e("s_nop 1")
    for r in range(8):
        e(f"v_readlane_b32 s{s_a}, v{SUM+r}, 0")
        e(f"v_readlane_b32 s{s_b}, v{SUM+r}, 32")
        e("s_nop 3")
        e(f"v_writelane_b32 v5, s{s_a}, {r}")
        e(f"v_writelane_b32 v6, s{s_b}, {r}")
    e("s_nop 1")
    e("v_add_f32 v5, v5, v6")
    e("v_cvt_pk_bf16_f32 v5, v5, v5")
    e("v_lshlrev_b32 v5, 16, v5")
    e("v_mul_f32 v6, 0xbfb8aa3b, v5")
    e("v_exp_f32 v6, v6")
    e("s_nop 0")
    e("v_add_f32 v6, 1.0, v6")
    e("v_rcp_f32 v6, v6")
    e("s_nop 0")
    e("v_cvt_pk_bf16_f32 v6, v6, v6")
    e("v_lshlrev_b32 v6, 16, v6")
    e(f"s_lshl_b32 s{s_a}, s{s_gw}, 5")
    e(f"s_add_u32 s{s_a}, s{s_a}, {WS_G}")
    e("v_lshlrev_b32 v7, 2, v1")
    e("s_mov_b64 exec, 0xff")
    e(f"buffer_store_dword v6, v7, s[{sWS}:{sWS+3}], s{s_a} offen")
    e("s_waitcnt vmcnt(0)")
    e("s_endpgm")


def gen_k1(name="k1_kernel"):
    e = E()
    L = name
    sX, sW, sWS, sB1 = 8, 12, 16, 20
    s_wave, s_mb, s_nt, s_rs = 30, 31, 32, 33
    s_xoff, s_woff, s_m0x, s_m0w = 34, 35, 36, 37
    s_tmp, s_tmp2, s_cnt = 38, 39, 40
    v_lane = 1
    v_dx0, v_dx1 = 2, 3
    v_dw = [4, 5, 6, 7]
    v_ax = [8, 9, 10, 11]
    v_aw = [12, 13]
    v_t = [14, 15, 16, 17, 18, 19]
    XF = [[20, 24], [28, 32]]
    WF = [[36, 40], [44, 48]]
    ACC = 64
    VB = 128
    def acc(tb, nb): return ACC + (tb*2+nb)*16

    e(f"s_cmp_ge_u32 s2, {K1_GRID}")
    e(f"s_cbranch_scc1 {L}_end")
    e("s_load_dwordx2 s[4:5], s[0:1], 0")
    e("s_load_dwordx2 s[6:7], s[0:1], 8")
    e("s_load_dwordx2 s[24:25], s[0:1], 32")
    e("s_load_dwordx2 s[26:27], s[0:1], 40")
    e("s_load_dwordx2 s[28:29], s[0:1], 88")
    e(f"v_and_b32 v{v_lane}, 63, v0")
    e("v_lshrrev_b32 v2, 6, v0")
    e("s_nop 0")
    e(f"v_readfirstlane_b32 s{s_wave}, v2")
    e("s_waitcnt lgkmcnt(0)")
    e(f"s_cmp_ge_u32 s2, {NTILE}")
    e(f"s_cbranch_scc1 {L}_aux")
    e(f"s_and_b32 s{s_mb}, s2, 15")
    e(f"s_lshr_b32 s{s_nt}, s2, 4")
    e(f"s_mov_b32 s{sX}, s4"); e(f"s_and_b32 s{sX+1}, s5, 0xffff"); e(f"s_mov_b32 s{sX+2}, {S*D*2}"); e(f"s_mov_b32 s{sX+3}, 0x20000")
    e(f"s_mov_b32 s{sWS}, s28"); e(f"s_and_b32 s{sWS+1}, s29, 0xffff"); e(f"s_mov_b32 s{sWS+2}, {WS_SIZE}"); e(f"s_mov_b32 s{sWS+3}, 0x20000")
    e(f"s_cmp_lt_u32 s{s_nt}, 6")
    e(f"s_cbranch_scc1 {L}_isqkv")
    e(f"s_sub_u32 s{s_tmp}, s{s_nt}, 6")
    e(f"s_lshl_b32 s{s_tmp}, s{s_tmp}, 9")
    e(f"s_add_u32 s{sW}, s24, s{s_tmp}")
    e(f"s_addc_u32 s{sW+1}, s25, 0")
    e(f"s_and_b32 s{sW+1}, s{sW+1}, 0xffff")
    e(f"s_sub_u32 s{sW+2}, {512*3584}, s{s_tmp}")
    e(f"s_mov_b32 s{s_rs}, 3584")
    e(f"s_branch {L}_wsel")
    e.label(f"{L}_isqkv")
    e(f"s_lshl_b32 s{s_tmp}, s{s_nt}, 9")
    e(f"s_add_u32 s{sW}, s6, s{s_tmp}")
    e(f"s_addc_u32 s{sW+1}, s7, 0")
    e(f"s_and_b32 s{sW+1}, s{sW+1}, 0xffff")
    e(f"s_sub_u32 s{sW+2}, {512*3072}, s{s_tmp}")
    e(f"s_mov_b32 s{s_rs}, 3072")
    e.label(f"{L}_wsel")
    e(f"s_mov_b32 s{sW+3}, 0x20000")
    ln = v_lane
    t0, t1, t2, t3, t4, t5 = v_t
    e(f"v_lshrrev_b32 v{t0}, 3, v{ln}")
    e(f"v_lshlrev_b32 v{t0}, 10, v{t0}")
    e(f"v_lshrrev_b32 v{t1}, 4, v{ln}")
    e(f"v_and_b32 v{t2}, 7, v{ln}")
    e(f"v_xor_b32 v{t3}, v{t2}, v{t1}")
    e(f"v_lshl_add_u32 v{v_dx0}, v{t3}, 4, v{t0}")
    e(f"v_add_u32 v{t1}, 4, v{t1}")
    e(f"v_xor_b32 v{t3}, v{t2}, v{t1}")
    e(f"v_lshl_add_u32 v{v_dx1}, v{t3}, 4, v{t0}")
    e(f"v_add_u32 v{v_dx1}, 8192, v{v_dx1}")
    e(f"v_lshrrev_b32 v{t0}, 5, v{ln}")
    e(f"v_mul_lo_u32 v{t1}, v{t0}, s{s_rs}")
    e(f"v_and_b32 v{t2}, 31, v{ln}")
    for jj in range(4):
        e(f"v_add_u32 v{t3}, {(2*jj)&3}, v{t0}")
        e(f"v_lshlrev_b32 v{t3}, 2, v{t3}")
        e(f"v_xor_b32 v{t3}, v{t2}, v{t3}")
        e(f"v_lshl_add_u32 v{v_dw[jj]}, v{t3}, 4, v{t1}")
        if jj:
            e(f"s_mul_i32 s{s_tmp}, s{s_rs}, {2*jj}")
            e(f"v_add_u32 v{v_dw[jj]}, s{s_tmp}, v{v_dw[jj]}")
    e(f"s_lshl_b32 s{s_xoff}, s{s_mb}, 7")
    e(f"s_lshl_b32 s{s_tmp}, s{s_wave}, 4")
    e(f"s_add_u32 s{s_xoff}, s{s_xoff}, s{s_tmp}")
    e(f"s_lshl_b32 s{s_xoff}, s{s_xoff}, 10")
    e(f"s_lshl_b32 s{s_tmp}, s{s_wave}, 3")
    e(f"s_mul_i32 s{s_woff}, s{s_tmp}, s{s_rs}")
    e(f"s_lshl_b32 s{s_m0x}, s{s_wave}, 11")
    e(f"s_lshl_b32 s{s_m0w}, s{s_wave}, 12")
    e(f"s_add_u32 s{s_m0w}, s{s_m0w}, 16384")

    def issue_dma(buf):
        base = buf*BUF
        e(f"s_add_u32 m0, s{s_m0x}, {base}")
        e("s_nop 0")
        e(f"buffer_load_dwordx4 v{v_dx0}, s[{sX}:{sX+3}], s{s_xoff} offen lds")
        e(f"s_add_u32 m0, s{s_m0x}, {base+1024}")
        e("s_nop 0")
        e(f"buffer_load_dwordx4 v{v_dx1}, s[{sX}:{sX+3}], s{s_xoff} offen lds")
        for jj in range(4):
            e(f"s_add_u32 m0, s{s_m0w}, {base+jj*1024}")
            e("s_nop 0")
            e(f"buffer_load_dwordx4 v{v_dw[jj]}, s[{sW}:{sW+3}], s{s_woff} offen lds")
        e(f"s_add_u32 s{s_xoff}, s{s_xoff}, 128")
        e(f"s_lshl_b32 s{s_tmp}, s{s_rs}, 6")
        e(f"s_add_u32 s{s_woff}, s{s_woff}, s{s_tmp}")

    issue_dma(0)

    wm_expr = None
    s_wm, s_wn = 41, 42
    e(f"s_lshr_b32 s{s_wm}, s{s_wave}, 2")
    e(f"s_and_b32 s{s_wn}, s{s_wave}, 3")
    e(f"v_and_b32 v{t0}, 31, v{ln}")
    e(f"s_lshl_b32 s{s_tmp}, s{s_wm}, 6")
    e(f"v_add_u32 v{t0}, s{s_tmp}, v{t0}")
    e(f"v_lshrrev_b32 v{t1}, 1, v{t0}")
    e(f"v_and_b32 v{t1}, 7, v{t1}")
    e(f"v_lshrrev_b32 v{t2}, 5, v{ln}")
    e(f"v_xor_b32 v{t1}, v{t1}, v{t2}")
    e(f"v_lshlrev_b32 v{t1}, 4, v{t1}")
    e(f"v_lshl_add_u32 v{v_ax[0]}, v{t0}, 7, v{t1}")
    for ks in range(1, 4):
        e(f"v_xor_b32 v{v_ax[ks]}, {ks<<5}, v{v_ax[0]}")
    e(f"v_lshrrev_b32 v{t0}, 2, v{ln}")
    e(f"v_and_b32 v{t0}, 3, v{t0}")
    e(f"v_lshrrev_b32 v{t1}, 5, v{ln}")
    e(f"v_lshl_add_u32 v{t1}, v{t1}, 3, v{t0}")
    e(f"v_lshlrev_b32 v{t1}, 9, v{t1}")
    e(f"v_add_u32 v{t1}, 16384, v{t1}")
    e(f"v_and_b32 v{t2}, 1, v{ln}")
    e(f"v_lshl_add_u32 v{t1}, v{t2}, 3, v{t1}")
    e(f"v_lshrrev_b32 v{t2}, 4, v{ln}")
    e(f"v_and_b32 v{t2}, 1, v{t2}")
    e(f"v_lshlrev_b32 v{t2}, 1, v{t2}")
    e(f"v_lshrrev_b32 v{t3}, 1, v{ln}")
    e(f"v_and_b32 v{t3}, 1, v{t3}")
    e(f"v_add_u32 v{t2}, v{t2}, v{t3}")
    e(f"s_lshl_b32 s{s_tmp}, s{s_wn}, 3")
    e(f"v_add_u32 v{t2}, s{s_tmp}, v{t2}")
    e(f"v_lshlrev_b32 v{t3}, 2, v{t0}")
    for nb in range(2):
        e(f"v_add_u32 v{t4}, {nb*4}, v{t2}")
        e(f"v_xor_b32 v{t4}, v{t4}, v{t3}")
        e(f"v_lshl_add_u32 v{v_aw[nb]}, v{t4}, 4, v{t1}")

    e(f"s_cmp_ge_u32 s{s_nt}, 6")
    e(f"s_cbranch_scc1 {L}_initbias")
    for i in range(64): e(f"v_mov_b32 v{ACC+i}, 0")
    e(f"s_branch {L}_initdone")
    e.label(f"{L}_initbias")
    e(f"s_mov_b32 s{sB1}, s26"); e(f"s_and_b32 s{sB1+1}, s27, 0xffff"); e(f"s_mov_b32 s{sB1+2}, {F*2}"); e(f"s_mov_b32 s{sB1+3}, 0x20000")
    e(f"s_sub_u32 s{s_tmp}, s{s_nt}, 6")
    e(f"s_lshl_b32 s{s_tmp}, s{s_tmp}, 8")
    e(f"s_lshl_b32 s{s_tmp2}, s{s_wn}, 6")
    e(f"s_add_u32 s{s_tmp}, s{s_tmp}, s{s_tmp2}")
    e(f"s_lshl_b32 s{s_tmp}, s{s_tmp}, 1")
    e(f"v_lshrrev_b32 v{t0}, 5, v{ln}")
    e(f"v_lshlrev_b32 v{t0}, 3, v{t0}")
    for nb in range(2):
        for a in range(4):
            e(f"buffer_load_dwordx2 v[{VB+nb*8+a*2}:{VB+nb*8+a*2+1}], v{t0}, s[{sB1}:{sB1+3}], s{s_tmp} offen offset:{nb*64+a*16}")
    e("s_waitcnt vmcnt(0)")
    for nb in range(2):
        for a in range(4):
            for dq in range(2):
                src = VB+nb*8+a*2+dq
                for tb in range(2):
                    d = acc(tb, nb) + 4*a + 2*dq
                    e(f"v_lshlrev_b32 v{d}, 16, v{src}")
                    e(f"v_and_b32 v{d+1}, 0xffff0000, v{src}")
    e.label(f"{L}_initdone")
    e(f"s_cmp_eq_u32 s{s_nt}, 4")
    e(f"s_cbranch_scc1 {L}_loopD")
    e(f"s_cmp_eq_u32 s{s_nt}, 5")
    e(f"s_cbranch_scc1 {L}_loopD")

    def reads(ks, fb, bufoff):
        for tb in range(2):
            e(f"ds_read_b128 v[{XF[fb][tb]}:{XF[fb][tb]+3}], v{v_ax[ks]} offset:{bufoff + tb*4096}")
        for nb in range(2):
            f = WF[fb][nb]
            e(f"ds_read_b64_tr_b16 v[{f}:{f+1}], v{v_aw[nb]} offset:{ks*8192}")
            e(f"ds_read_b64_tr_b16 v[{f+2}:{f+3}], v{v_aw[nb]} offset:{ks*8192+2048}")

    def main_loop(tag, dprime):
        e(f"s_mov_b32 s{s_cnt}, 0")
        e.label(f"{L}_{tag}_loop")
        for half in range(2):
            buf = half
            e("s_waitcnt vmcnt(0)")
            e("s_barrier")
            if half == 0:
                issue_dma(1)
            else:
                e(f"s_cmp_ge_u32 s{s_cnt}, 3")
                e(f"s_cbranch_scc1 {L}_{tag}_skipdma")
                issue_dma(0)
                e.label(f"{L}_{tag}_skipdma")
            reads(0, 0, buf*BUF)
            for ks in range(4):
                fb = ks & 1
                if ks < 3:
                    reads(ks+1, fb ^ 1, buf*BUF)
                    e("s_waitcnt lgkmcnt(6)")
                else:
                    e("s_waitcnt lgkmcnt(0)")
                for tb in range(2):
                    for nb in range(2):
                        a = acc(tb, nb)
                        xf = XF[fb][tb]; wf = WF[fb][nb]
                        if dprime:
                            e(f"v_mfma_f32_32x32x16_bf16 v[{a}:{a+15}], v[{wf}:{wf+3}], v[{xf}:{xf+3}], v[{a}:{a+15}]")
                        else:
                            e(f"v_mfma_f32_32x32x16_bf16 v[{a}:{a+15}], v[{xf}:{xf+3}], v[{wf}:{wf+3}], v[{a}:{a+15}]")
            for nb in range(2):
                if half == 0: e(f"v_add_u32 v{v_aw[nb]}, {BUF}, v{v_aw[nb]}")
                else:         e(f"v_subrev_u32 v{v_aw[nb]}, {BUF}, v{v_aw[nb]}")
        e(f"s_add_u32 s{s_cnt}, s{s_cnt}, 1")
        e(f"s_cmp_lt_u32 s{s_cnt}, 4")
        e(f"s_cbranch_scc1 {L}_{tag}_loop")
        e("s_nop 15")
        e("s_nop 3")

    main_loop("Dp", True)
    e(f"s_cmp_ge_u32 s{s_nt}, 6")
    e(f"s_cbranch_scc1 {L}_epi_ffn")
    e(f"s_and_b32 s{s_tmp}, s{s_nt}, 1")
    e(f"s_lshl_b32 s{s_tmp}, s{s_tmp}, 4")
    e(f"s_lshl_b32 s{s_tmp2}, s{s_wn}, 2")
    e(f"s_add_u32 s{s_tmp}, s{s_tmp}, s{s_tmp2}")
    e(f"s_lshl_b32 s{s_tmp2}, s{s_mb}, 2")
    e(f"s_lshl_b32 s{s_cnt}, s{s_wm}, 1")
    e(f"s_add_u32 s{s_tmp2}, s{s_tmp2}, s{s_cnt}")
    s_hs, s_ts, s_base = 43, 44, 45
    e(f"s_cmp_lt_u32 s{s_nt}, 2")
    e(f"s_cbranch_scc1 {L}_epi_q")
    e(f"s_lshl_b32 s{s_tmp}, s{s_tmp}, 17")
    e(f"s_lshl_b32 s{s_tmp2}, s{s_tmp2}, 11")
    e(f"s_add_u32 s{s_base}, s{s_tmp}, s{s_tmp2}")
    e(f"s_add_u32 s{s_base}, s{s_base}, {WS_KV}")
    e(f"s_mov_b32 s{s_hs}, 131072")
    e(f"s_mov_b32 s{s_ts}, 2048")
    e(f"s_branch {L}_epi_qk_store")
    e.label(f"{L}_epi_q")
    e(f"s_lshl_b32 s{s_tmp}, s{s_tmp}, 16")
    e(f"s_lshl_b32 s{s_tmp2}, s{s_tmp2}, 10")
    e(f"s_add_u32 s{s_base}, s{s_tmp}, s{s_tmp2}")
    e(f"s_add_u32 s{s_base}, s{s_base}, {WS_QF}")
    e(f"s_mov_b32 s{s_hs}, 65536")
    e(f"s_mov_b32 s{s_ts}, 1024")
    e.label(f"{L}_epi_qk_store")
    e(f"v_lshlrev_b32 v{t0}, 4, v{ln}")
    for tb in range(2):
        for nb in range(2):
            for hs in range(2):
                a = acc(tb, nb) + hs*8
                d = VB + ((tb*2+nb)*2+hs)*4
                for p in range(4):
                    e(f"v_cvt_pk_bf16_f32 v{d+p}, v{a+2*p}, v{a+2*p+1}")
                e(f"s_mul_i32 s{s_tmp}, s{s_hs}, {nb*2+hs}")
                e(f"s_add_u32 s{s_tmp}, s{s_tmp}, s{s_base}")
                if tb: e(f"s_add_u32 s{s_tmp}, s{s_tmp}, s{s_ts}")
                e(f"buffer_store_dwordx4 v[{d}:{d+3}], v{t0}, s[{sWS}:{sWS+3}], s{s_tmp} offen")
    e("s_waitcnt vmcnt(0)")
    e("s_endpgm")

    e.label(f"{L}_epi_ffn")
    e(f"s_sub_u32 s{s_tmp}, s{s_nt}, 6")
    e(f"s_lshl_b32 s{s_tmp}, s{s_tmp}, 4")
    e(f"s_lshl_b32 s{s_tmp2}, s{s_wn}, 2")
    e(f"s_add_u32 s{s_tmp}, s{s_tmp}, s{s_tmp2}")
    e(f"s_lshl_b32 s{s_tmp2}, s{s_mb}, 2")
    e(f"s_lshl_b32 s{s_cnt}, s{s_wm}, 1")
    e(f"s_add_u32 s{s_tmp2}, s{s_tmp2}, s{s_cnt}")
    e(f"s_mul_i32 s{s_tmp2}, s{s_tmp2}, 112")
    e(f"s_add_u32 s{s_tmp}, s{s_tmp}, s{s_tmp2}")
    e(f"s_lshl_b32 s{s_tmp}, s{s_tmp}, 10")
    e(f"s_add_u32 s{s_base}, s{s_tmp}, {WS_HF}")
    e(f"v_lshlrev_b32 v{t0}, 4, v{ln}")
    for tb in range(2):
        for nb in range(2):
            for hs in range(2):
                a = acc(tb, nb) + hs*8
                d = VB + ((tb*2+nb)*2+hs)*4
                for p in range(4):
                    x0, x1 = a+2*p, a+2*p+1
                    e(f"v_cvt_pk_bf16_f32 v{d+p}, v{x0}, v{x1}")
                    e(f"v_lshlrev_b32 v{x0}, 16, v{d+p}")
                    e(f"v_and_b32 v{x1}, 0xffff0000, v{d+p}")
                    e(f"v_max_f32 v{x0}, 0, v{x0}")
                    e(f"v_max_f32 v{x1}, 0, v{x1}")
                    e(f"v_mul_f32 v{x0}, v{x0}, v{x0}")
                    e(f"v_mul_f32 v{x1}, v{x1}, v{x1}")
                    e(f"v_cvt_pk_bf16_f32 v{d+p}, v{x0}, v{x1}")
                off = (nb*2+hs)*1024 + tb*112*1024
                e(f"s_add_u32 s{s_tmp}, s{s_base}, {off}")
                e(f"buffer_store_dwordx4 v[{d}:{d+3}], v{t0}, s[{sWS}:{sWS+3}], s{s_tmp} offen")
    e("s_waitcnt vmcnt(0)")
    e("s_endpgm")

    e.label(f"{L}_loopD")
    main_loop("D", False)
    e(f"s_sub_u32 s{s_tmp}, s{s_nt}, 4")
    e(f"s_lshl_b32 s{s_tmp}, s{s_tmp}, 4")
    e(f"s_lshl_b32 s{s_tmp2}, s{s_wn}, 2")
    e(f"s_add_u32 s{s_tmp}, s{s_tmp}, s{s_tmp2}")
    e(f"s_lshl_b32 s{s_tmp}, s{s_tmp}, 17")
    e(f"s_lshl_b32 s{s_tmp2}, s{s_mb}, 2")
    e(f"s_lshl_b32 s{s_cnt}, s{s_wm}, 1")
    e(f"s_add_u32 s{s_tmp2}, s{s_tmp2}, s{s_cnt}")
    e(f"s_lshl_b32 s{s_tmp2}, s{s_tmp2}, 11")
    e(f"s_add_u32 s{s_base}, s{s_tmp}, s{s_tmp2}")
    e(f"s_add_u32 s{s_base}, s{s_base}, {WS_KV+1024}")
    e(f"v_lshrrev_b32 v{t0}, 4, v{ln}")
    e(f"v_and_b32 v{t0}, 1, v{t0}")
    e(f"v_lshlrev_b32 v{t0}, 17, v{t0}")
    e(f"v_lshrrev_b32 v{t1}, 5, v{ln}")
    e(f"v_lshl_add_u32 v{t0}, v{t1}, 8, v{t0}")
    e(f"v_and_b32 v{t1}, 15, v{ln}")
    e(f"v_lshl_add_u32 v{t0}, v{t1}, 4, v{t0}")
    for tb in range(2):
        for nb in range(2):
            for u in range(2):
                a = acc(tb, nb) + u*8
                d = VB + ((tb*2+nb)*2+u)*4
                for p in range(4):
                    e(f"v_cvt_pk_bf16_f32 v{d+p}, v{a+2*p}, v{a+2*p+1}")
                off = nb*2*131072 + tb*2048 + u*512
                e(f"s_add_u32 s{s_tmp}, s{s_base}, {off}")
                e(f"buffer_store_dwordx4 v[{d}:{d+3}], v{t0}, s[{sWS}:{sWS+3}], s{s_tmp} offen")
    e("s_waitcnt vmcnt(0)")
    e("s_endpgm")

    e.label(f"{L}_aux")
    gen_aux(e, L, s_wave)
    e.label(f"{L}_end")
    e("s_endpgm")
    return e.text(), 160

if __name__ == "__main__":
    from asmlib import *
    txt, nv = gen_k1()
    out = HEADER + kernel_begin("k1_kernel") + txt + kernel_descriptor("k1_kernel", nv, 64) + metadata([("k1_kernel", nv, 64, 512)])
    open("k1.s", "w").write(out)
```

```python
from layouts import *
from gen_k1 import E

DEBUG = False
K2_GRID = 256
K2_LDS = 139264
C_SCALE = 0x3eb8aa3b
import struct
assert abs(struct.unpack('<f', struct.pack('<I', C_SCALE))[0] - 0.25*1.4426950408889634) < 1e-7

def gen_k2(name="k2_kernel"):
    e = E(); L = name
    sWS = 8
    s_wave, s_head, s_T, s_kvb, s_off, s_tmp, s_tmp2, s_cnt, s_flag = 12, 13, 14, 15, 16, 17, 18, 19, 20
    s_vmask = 22
    ln = 1
    QH, QL = 4, 8
    MB = 16
    SA, SB = 32, 48
    OA = 64
    KF = [80, 84]
    VF = [[88, 92], [96, 100]]
    v_ak, v_av = 2, 3
    T = list(range(104, 120))
    NV = 120
    def mfma(d, a, b, c):
        cs = f"v[{c}:{c+15}]" if isinstance(c, int) else c
        e(f"v_mfma_f32_32x32x16_bf16 v[{d}:{d+15}], v[{a}:{a+3}], v[{b}:{b+3}], {cs}")

    dbgslot = [0]
    def dump(reg, n, cond_cnt=None):
        if not DEBUG: return
        lab = f"{L}_dbg{dbgslot[0]}"
        e("s_nop 15"); e("s_nop 3")
        e("s_cmp_lg_u32 s2, 0"); e(f"s_cbranch_scc1 {lab}")
        e(f"s_cmp_lg_u32 s{s_wave}, 0"); e(f"s_cbranch_scc1 {lab}")
        if cond_cnt is not None:
            e(f"s_cmp_lg_u32 s{s_cnt}, {cond_cnt}"); e(f"s_cbranch_scc1 {lab}")
        e(f"v_lshlrev_b32 v{T[15]}, 4, v{ln}")
        for i in range(n//4):
            e(f"s_mov_b32 s21, {WS_BO + dbgslot[0]*1024}")
            e(f"buffer_store_dwordx4 v[{reg+4*i}:{reg+4*i+3}], v{T[15]}, s[{sWS}:{sWS+3}], s21 offen")
            dbgslot[0] += 1
        e("s_waitcnt vmcnt(0)")
        e.label(lab)
    e(f"s_cmp_ge_u32 s2, {K2_GRID}")
    e(f"s_cbranch_scc1 {L}_end")
    e("s_load_dwordx2 s[4:5], s[0:1], 88")
    e(f"v_and_b32 v{ln}, 63, v0")
    e("v_lshrrev_b32 v2, 6, v0")
    e("s_nop 0")
    e(f"v_readfirstlane_b32 s{s_wave}, v2")
    e(f"s_and_b32 s{s_head}, s2, 7")
    e(f"s_lshl_b32 s{s_head}, s{s_head}, 2")
    e(f"s_lshr_b32 s{s_tmp}, s2, 6")
    e(f"s_add_u32 s{s_head}, s{s_head}, s{s_tmp}")
    e(f"s_lshr_b32 s{s_tmp}, s2, 3")
    e(f"s_and_b32 s{s_tmp}, s{s_tmp}, 7")
    e(f"s_lshl_b32 s{s_T}, s{s_tmp}, 3")
    e(f"s_add_u32 s{s_T}, s{s_T}, s{s_wave}")
    e("s_waitcnt lgkmcnt(0)")
    e(f"s_mov_b32 s{sWS}, s4"); e(f"s_and_b32 s{sWS+1}, s5, 0xffff"); e(f"s_mov_b32 s{sWS+2}, {WS_SIZE}"); e(f"s_mov_b32 s{sWS+3}, 0x20000")
    e(f"v_lshlrev_b32 v{v_ak}, 4, v{ln}")
    e(f"s_lshl_b32 s{s_kvb}, s{s_head}, 17")
    e(f"s_add_u32 s{s_kvb}, s{s_kvb}, {WS_KV}")
    e(f"s_lshl_b32 s{s_tmp2}, s{s_wave}, 10")
    e(f"s_add_u32 s{s_kvb}, s{s_kvb}, s{s_tmp2}")
    for ii in range(16):
        e(f"s_add_u32 m0, s{s_tmp2}, {ii*8192}")
        e(f"s_add_u32 s{s_off}, s{s_kvb}, {ii*8192}")
        e(f"buffer_load_dwordx4 v{v_ak}, s[{sWS}:{sWS+3}], s{s_off} offen lds")
    e(f"s_lshl_b32 s{s_off}, s{s_head}, 16")
    e(f"s_lshl_b32 s{s_tmp}, s{s_T}, 10")
    e(f"s_add_u32 s{s_off}, s{s_off}, s{s_tmp}")
    e(f"s_add_u32 s{s_off}, s{s_off}, {WS_QF}")
    q = T[0]
    e(f"buffer_load_dwordx4 v[{q}:{q+3}], v{v_ak}, s[{sWS}:{sWS+3}], s{s_off} offen")
    e(f"v_lshrrev_b32 v{T[4]}, 5, v{ln}")
    e(f"v_lshlrev_b32 v{T[4]}, 8, v{T[4]}")
    e(f"v_and_b32 v{T[5]}, 15, v{ln}")
    e(f"v_lshl_add_u32 v{v_av}, v{T[5]}, 4, v{T[4]}")
    e(f"v_add_u32 v{v_av}, 1024, v{v_av}")
    for b in range(2):
        for u in range(2):
            for i in range(4):
                e(f"v_mov_b32 v{VF[b][u]+i}, 0x3f803f80")
    e(f"s_mov_b32 s{s_vmask}, 0x0000ffff")
    e(f"s_mov_b32 s{s_vmask+1}, 0x0000ffff")
    e("s_waitcnt vmcnt(0)")
    e("s_barrier")
    if DEBUG:
        e("s_cmp_lg_u32 s2, 0"); e(f"s_cbranch_scc1 {L}_ldsd")
        e(f"s_lshl_b32 s21, s{s_wave}, 14")
        e(f"v_add_u32 v{T[14]}, s21, v{v_ak}")
        for ii in range(16):
            e(f"ds_read_b128 v[{T[4]}:{T[7]}], v{T[14]} offset:{ii*1024}")
            e("s_waitcnt lgkmcnt(0)")
            e(f"s_lshl_b32 s21, s{s_wave}, 14")
            e(f"s_add_u32 s21, s21, {WS_BO + 0x100000 + ii*1024}")
            e(f"buffer_store_dwordx4 v[{T[4]}:{T[7]}], v{v_ak}, s[{sWS}:{sWS+3}], s21 offen")
            e("s_waitcnt vmcnt(0)")
        e.label(f"{L}_ldsd")
    kx = T[4]
    acc, mx, tmp = T[8], T[9], T[10]
    e(f"s_lshl_b32 s{s_tmp}, s{s_wave}, 14")
    e(f"v_add_u32 v{tmp}, s{s_tmp}, v{v_ak}")
    e(f"v_mov_b32 v{mx}, 0")
    for tt in range(8):
        e(f"ds_read_b128 v[{kx}:{kx+3}], v{tmp} offset:{tt*2048}")
        e("s_waitcnt lgkmcnt(0)")
        e(f"v_mov_b32 v{acc}, 0")
        for i in range(4):
            e(f"v_dot2_f32_bf16 v{acc}, v{kx+i}, v{kx+i}, v{acc}")
        e("s_nop 2")
        e(f"v_mov_b32 v{T[11]}, v{acc}")
        e("s_nop 1")
        e(f"v_permlane32_swap_b32 v{acc}, v{T[11]}")
        e(f"v_add_f32 v{acc}, v{acc}, v{T[11]}")
        e(f"v_max_f32 v{mx}, v{mx}, v{acc}")
    for sw in [0x041F, 0x081F, 0x101F, 0x201F, 0x401F]:
        e(f"ds_swizzle_b32 v{tmp}, v{mx} offset:{sw}")
        e("s_waitcnt lgkmcnt(0)")
        e(f"v_max_f32 v{mx}, v{mx}, v{tmp}")
    e(f"s_lshl_b32 s{s_tmp}, s{s_wave}, 2")
    e(f"v_mov_b32 v{tmp}, s{s_tmp}")
    e(f"v_add_u32 v{tmp}, 131072, v{tmp}")
    e(f"ds_write_b32 v{tmp}, v{mx}")
    e("s_waitcnt lgkmcnt(0)")
    e("s_barrier")
    e(f"v_mov_b32 v{tmp}, 131072")
    e(f"ds_read_b128 v[{kx}:{kx+3}], v{tmp}")
    e(f"ds_read_b128 v[{T[12]}:{T[15]}], v{tmp} offset:16")
    e("s_waitcnt lgkmcnt(0)")
    e(f"v_max3_f32 v{mx}, v{kx}, v{kx+1}, v{kx+2}")
    e(f"v_max3_f32 v{mx}, v{mx}, v{kx+3}, v{T[12]}")
    e(f"v_max3_f32 v{mx}, v{mx}, v{T[13]}, v{T[14]}")
    e(f"v_max_f32 v{mx}, v{mx}, v{T[15]}")
    e(f"v_mov_b32 v{acc}, 0")
    for i in range(4):
        e(f"v_dot2_f32_bf16 v{acc}, v{q+i}, v{q+i}, v{acc}")
    e("s_nop 2")
    e(f"v_mov_b32 v{T[11]}, v{acc}")
    e("s_nop 1")
    e(f"v_permlane32_swap_b32 v{acc}, v{T[11]}")
    e(f"v_add_f32 v{acc}, v{acc}, v{T[11]}")
    e(f"v_mul_f32 v{acc}, v{acc}, v{mx}")
    e(f"v_sqrt_f32 v{acc}, v{acc}")
    e("s_nop 0")
    e(f"v_mul_f32 v{acc}, {hex(C_SCALE)}, v{acc}")
    for i in range(16):
        e(f"v_sub_f32 v{MB+i}, 0, v{acc}")
    lo, hi, r0, r1 = T[4], T[5], T[6], T[7]
    for i in range(4):
        e(f"v_lshlrev_b32 v{lo}, 16, v{q+i}")
        e(f"v_and_b32 v{hi}, 0xffff0000, v{q+i}")
        e(f"v_mul_f32 v{lo}, {hex(C_SCALE)}, v{lo}")
        e(f"v_mul_f32 v{hi}, {hex(C_SCALE)}, v{hi}")
        e(f"v_cvt_pk_bf16_f32 v{QH+i}, v{lo}, v{hi}")
        e(f"v_lshlrev_b32 v{r0}, 16, v{QH+i}")
        e(f"v_and_b32 v{r1}, 0xffff0000, v{QH+i}")
        e(f"v_sub_f32 v{lo}, v{lo}, v{r0}")
        e(f"v_sub_f32 v{hi}, v{hi}, v{r1}")
        e(f"v_cvt_pk_bf16_f32 v{QL+i}, v{lo}, v{hi}")
    e(f"s_mov_b32 s{s_flag}, 0")
    dump(MB, 4)
    dump(T[8], 4)

    e.label(f"{L}_main")
    for i in range(16): e(f"v_mov_b32 v{OA+i}, 0")
    e(f"v_lshlrev_b32 v{v_ak}, 4, v{ln}")
    e(f"ds_read_b128 v[{KF[0]}:{KF[0]+3}], v{v_ak}")
    e(f"ds_read_b128 v[{KF[1]}:{KF[1]+3}], v{v_ak} offset:2048")
    e("s_waitcnt lgkmcnt(1)")
    mfma(SA, KF[0], QH, MB)
    mfma(SA, KF[0], QL, SA)
    e(f"s_mov_b64 exec, s[{s_vmask}:{s_vmask+1}]")
    e(f"ds_read_b128 v[{VF[0][0]}:{VF[0][0]+3}], v{v_av}")
    e(f"ds_read_b128 v[{VF[0][1]}:{VF[0][1]+3}], v{v_av} offset:512")
    e("s_mov_b64 exec, -1")
    e("s_nop 7")
    e(f"s_mov_b32 s{s_cnt}, 0")
    e.label(f"{L}_loop")
    for half in range(2):
        X, Y = (SA, SB) if half == 0 else (SB, SA)
        kcur, knext = KF[(half+1) & 1], KF[half & 1]
        vb = half
        toff = half*2048
        e("s_waitcnt lgkmcnt(2)")
        mfma(Y, kcur, QH, MB)
        mfma(Y, kcur, QL, Y)
        e(f"ds_read_b128 v[{knext}:{knext+3}], v{v_ak} offset:{toff + 2*2048}")
        for i in range(16):
            e(f"v_exp_f32 v{X+i}, v{X+i}")
        for p in range(8):
            e(f"v_cvt_pk_bf16_f32 v{X+p}, v{X+2*p}, v{X+2*p+1}")
        e("s_waitcnt lgkmcnt(1)")
        mfma(OA, VF[vb][0], X, OA)
        mfma(OA, VF[vb][1], X+4, OA)
        e(f"s_mov_b64 exec, s[{s_vmask}:{s_vmask+1}]")
        e(f"ds_read_b128 v[{VF[vb^1][0]}:{VF[vb^1][0]+3}], v{v_av} offset:{toff + 2048}")
        e(f"ds_read_b128 v[{VF[vb^1][1]}:{VF[vb^1][1]+3}], v{v_av} offset:{toff + 2048 + 512}")
        e("s_mov_b64 exec, -1")
    e(f"v_add_u32 v{v_ak}, 4096, v{v_ak}")
    e(f"v_add_u32 v{v_av}, 4096, v{v_av}")
    e(f"s_add_u32 s{s_cnt}, s{s_cnt}, 1")
    e(f"s_cmp_lt_u32 s{s_cnt}, 32")
    e(f"s_cbranch_scc1 {L}_loop")
    e("s_waitcnt lgkmcnt(0)")
    e("s_nop 15")
    e(f"v_subrev_u32 v{v_av}, {32*4096}, v{v_av}")
    dump(OA, 16)
    e(f"s_cmp_lg_u32 s{s_flag}, 0")
    e(f"s_cbranch_scc1 {L}_finish")
    e(f"v_cmp_nge_f32 vcc, 0x21800000, v{OA+8}")
    e("s_nop 1")
    e("s_cmp_eq_u64 vcc, exec")
    e(f"s_cbranch_scc1 {L}_finish")
    e(f"s_mov_b32 s{s_flag}, 1")
    mxr = T[4]
    e(f"v_mov_b32 v{mxr}, 0xff800000")
    e(f"v_lshlrev_b32 v{v_ak}, 4, v{ln}")
    e(f"s_mov_b32 s{s_cnt}, 0")
    e.label(f"{L}_maxloop")
    e(f"ds_read_b128 v[{KF[0]}:{KF[0]+3}], v{v_ak}")
    e("s_waitcnt lgkmcnt(0)")
    mfma(SA, KF[0], QH, "0")
    mfma(SA, KF[0], QL, SA)
    e("s_nop 15")
    e("s_nop 3")
    for i in range(8):
        e(f"v_max3_f32 v{mxr}, v{mxr}, v{SA+2*i}, v{SA+2*i+1}")
    e(f"v_add_u32 v{v_ak}, 2048, v{v_ak}")
    e(f"s_add_u32 s{s_cnt}, s{s_cnt}, 1")
    e(f"s_cmp_lt_u32 s{s_cnt}, 64")
    e(f"s_cbranch_scc1 {L}_maxloop")
    e(f"v_mov_b32 v{T[5]}, v{mxr}")
    e("s_nop 1")
    e(f"v_permlane32_swap_b32 v{mxr}, v{T[5]}")
    e(f"v_max_f32 v{mxr}, v{mxr}, v{T[5]}")
    for i in range(16):
        e(f"v_sub_f32 v{MB+i}, 0, v{mxr}")
    e("s_nop 1")
    e(f"s_branch {L}_main")
    e.label(f"{L}_finish")
    r = T[4]
    e(f"v_rcp_f32 v{r}, v{OA+8}")
    e("s_nop 0")
    for i in range(8):
        e(f"v_mul_f32 v{OA+i}, v{OA+i}, v{r}")
    o = T[8]
    for p in range(4):
        e(f"v_cvt_pk_bf16_f32 v{o+p}, v{OA+2*p}, v{OA+2*p+1}")
    e(f"s_lshl_b32 s{s_off}, s{s_T}, 5")
    e(f"s_add_u32 s{s_off}, s{s_off}, s{s_head}")
    e(f"s_lshl_b32 s{s_off}, s{s_off}, 10")
    e(f"s_add_u32 s{s_off}, s{s_off}, {WS_OF}")
    e(f"v_lshlrev_b32 v{T[5]}, 4, v{ln}")
    e(f"buffer_store_dwordx4 v[{o}:{o+3}], v{T[5]}, s[{sWS}:{sWS+3}], s{s_off} offen")
    e("s_waitcnt vmcnt(0)")
    e.label(f"{L}_end")
    e("s_endpgm")
    return e.text(), NV

if __name__ == "__main__":
    from asmlib import *
    txt, nv = gen_k2()
    out = HEADER + kernel_begin("k2_kernel") + txt + kernel_descriptor("k2_kernel", nv, 64) + metadata([("k2_kernel", nv, 64, 512)])
    open("k2.s", "w").write(out)
```

```python
from layouts import *
from gen_k1 import E
K3_GRID = 256
NBUF3 = 4
K3_LDS = NBUF3*32768
NCH = 18

def gen_k3(name="k3_kernel"):
    e = E(); L = name
    sWS, sOUT, sB2 = 8, 12, 16
    s_wave, s_mb, s_nbw, s_wm, s_wn, s_bA, s_bB, s_off, s_tmp, s_tmp2, s_m0b = 20, 21, 22, 23, 24, 25, 26, 27, 28, 29, 30
    ln = 1
    v_l16 = 2
    RA = [96, 97, 98, 99]; RB = [100, 101, 102, 103]
    AF = [8, 12]; BF = [16, 20]
    ACA, ACB = 32, 48
    B2R = 64
    PK = 72
    T = list(range(80, 96))
    NV = 104
    e(f"s_cmp_ge_u32 s2, {K3_GRID}")
    e(f"s_cbranch_scc1 {L}_end")
    e("s_load_dwordx2 s[4:5], s[0:1], 88")
    e("s_load_dwordx2 s[6:7], s[0:1], 72")
    e("s_load_dwordx2 s[32:33], s[0:1], 56")
    e(f"v_and_b32 v{ln}, 63, v0")
    e("v_lshrrev_b32 v2, 6, v0")
    e("s_nop 0")
    e(f"v_readfirstlane_b32 s{s_wave}, v2")
    e(f"s_lshr_b32 s{s_mb}, s2, 3")
    e(f"s_and_b32 s{s_nbw}, s2, 7")
    e(f"s_lshr_b32 s{s_wm}, s{s_wave}, 1")
    e(f"s_and_b32 s{s_wn}, s{s_wave}, 1")
    e("s_waitcnt lgkmcnt(0)")
    e(f"s_mov_b32 s{sWS}, s4"); e(f"s_and_b32 s{sWS+1}, s5, 0xffff"); e(f"s_mov_b32 s{sWS+2}, {WS_SIZE}"); e(f"s_mov_b32 s{sWS+3}, 0x20000")
    e(f"s_mov_b32 s{sOUT}, s6"); e(f"s_and_b32 s{sOUT+1}, s7, 0xffff"); e(f"s_mov_b32 s{sOUT+2}, {S*D*2}"); e(f"s_mov_b32 s{sOUT+3}, 0x20000")
    e(f"s_mov_b32 s{sB2}, s32"); e(f"s_and_b32 s{sB2+1}, s33, 0xffff"); e(f"s_mov_b32 s{sB2+2}, 1024"); e(f"s_mov_b32 s{sB2+3}, 0x20000")
    e(f"v_lshlrev_b32 v{v_l16}, 4, v{ln}")
    e(f"s_cmp_lt_u32 s{s_wave}, 2")
    e(f"s_cbranch_scc1 {L}_astream")
    e(f"s_lshl_b32 s{s_tmp}, s{s_nbw}, 1")
    e(f"s_add_u32 s{s_tmp}, s{s_tmp}, s{s_wave}")
    e(f"s_sub_u32 s{s_tmp}, s{s_tmp}, 2")
    e(f"s_mul_i32 s{s_bA}, s{s_tmp}, {32*1024}")
    e(f"s_add_u32 s{s_bA}, s{s_bA}, {WS_WOF}")
    e(f"s_mul_i32 s{s_bB}, s{s_tmp}, {112*1024}")
    e(f"s_add_u32 s{s_bB}, s{s_bB}, {WS_W2F}")
    e(f"s_branch {L}_streamdone")
    e.label(f"{L}_astream")
    e(f"s_lshl_b32 s{s_tmp}, s{s_mb}, 1")
    e(f"s_add_u32 s{s_tmp}, s{s_tmp}, s{s_wave}")
    e(f"s_mul_i32 s{s_bA}, s{s_tmp}, {32*1024}")
    e(f"s_add_u32 s{s_bA}, s{s_bA}, {WS_OF}")
    e(f"s_mul_i32 s{s_bB}, s{s_tmp}, {112*1024}")
    e(f"s_add_u32 s{s_bB}, s{s_bB}, {WS_HF}")
    e.label(f"{L}_streamdone")
    e(f"s_lshl_b32 s{s_m0b}, s{s_wave}, 13")
    def issue(c):
        buf = (c % NBUF3)*32768
        for hh in range(2):
            if c < 4: e(f"s_add_u32 s{s_off}, s{s_bA}, {c*8192 + hh*4096}")
            else:     e(f"s_add_u32 s{s_off}, s{s_bB}, {(c-4)*8192 + hh*4096}")
            e(f"s_add_u32 m0, s{s_m0b}, {buf + hh*4096}")
            e("s_nop 0")
            for i in range(4):
                e(f"buffer_load_dwordx4 v{v_l16}, s[{sWS}:{sWS+3}], s{s_off} offen offset:{i*1024} lds")
    for c in range(3): issue(c)
    e(f"s_lshl_b32 s{s_tmp}, s{s_wm}, 13")
    e(f"v_add_u32 v{RA[0]}, s{s_tmp}, v{v_l16}")
    e(f"s_lshl_b32 s{s_tmp}, s{s_wn}, 13")
    e(f"s_add_u32 s{s_tmp}, s{s_tmp}, 16384")
    e(f"v_add_u32 v{RB[0]}, s{s_tmp}, v{v_l16}")
    for b in range(1, 4):
        e(f"v_add_u32 v{RA[b]}, {b*32768}, v{RA[0]}")
        e(f"v_add_u32 v{RB[b]}, {b*32768}, v{RB[0]}")
    e(f"s_lshl_b32 s{s_tmp}, s{s_mb}, 6")
    e(f"s_lshl_b32 s{s_tmp2}, s{s_wm}, 5")
    e(f"s_add_u32 s{s_tmp}, s{s_tmp}, s{s_tmp2}")
    e(f"v_and_b32 v{T[0]}, 31, v{ln}")
    e(f"v_add_u32 v{T[0]}, s{s_tmp}, v{T[0]}")
    e(f"v_lshlrev_b32 v{T[1]}, 2, v{T[0]}")
    e(f"s_mov_b32 s{s_off}, {WS_G}")
    e(f"buffer_load_dword v{T[2]}, v{T[1]}, s[{sWS}:{sWS+3}], s{s_off} offen")
    e(f"s_lshl_b32 s{s_tmp}, s{s_nbw}, 6")
    e(f"s_lshl_b32 s{s_tmp2}, s{s_wn}, 5")
    e(f"s_add_u32 s{s_tmp}, s{s_tmp}, s{s_tmp2}")
    e(f"s_lshl_b32 s{s_tmp}, s{s_tmp}, 1")
    e(f"v_lshrrev_b32 v{T[3]}, 5, v{ln}")
    e(f"v_lshlrev_b32 v{T[3]}, 3, v{T[3]}")
    for a in range(4):
        e(f"buffer_load_dwordx2 v[{B2R+2*a}:{B2R+2*a+1}], v{T[3]}, s[{sB2}:{sB2+3}], s{s_tmp} offen offset:{a*16}")
    NEXTRA = 5
    for i in range(16):
        e(f"v_mov_b32 v{ACA+i}, 0")
        e(f"v_mov_b32 v{ACB+i}, 0")
    def reads(ks, fb, buf):
        e(f"ds_read_b128 v[{AF[fb]}:{AF[fb]+3}], v{RA[buf//32768]} offset:{ks*1024}")
        e(f"ds_read_b128 v[{BF[fb]}:{BF[fb]+3}], v{RB[buf//32768]} offset:{ks*1024}")
    for c in range(NCH):
        buf = (c % NBUF3)*32768
        younger = 0
        for cc in range(c+1, min(c+3, NCH)): younger += 8
        if c <= 2: younger += NEXTRA
        e(f"s_waitcnt vmcnt({younger})")
        e("s_barrier")
        if c + 3 < NCH: issue(c+3)
        acc = ACA if c < 4 else ACB
        reads(0, 0, buf)
        for ks in range(8):
            fb = ks & 1
            if ks < 7:
                reads(ks+1, fb ^ 1, buf)
                e("s_waitcnt lgkmcnt(2)")
            else:
                e("s_waitcnt lgkmcnt(0)")
            e(f"v_mfma_f32_32x32x16_bf16 v[{acc}:{acc+15}], v[{BF[fb]}:{BF[fb]+3}], v[{AF[fb]}:{AF[fb]+3}], v[{acc}:{acc+15}]")
    e("s_nop 15"); e("s_nop 3")
    e("s_waitcnt vmcnt(0)")
    g, omg = T[2], T[4]
    e(f"v_sub_f32 v{omg}, 1.0, v{g}")
    e(f"v_cvt_pk_bf16_f32 v{omg}, v{omg}, v{omg}")
    e(f"v_lshlrev_b32 v{omg}, 16, v{omg}")
    x0, x1, y0, y1, t = T[5], T[6], T[7], T[8], T[9]
    for p in range(8):
        a0, a1 = ACA+2*p, ACA+2*p+1
        b0, b1 = ACB+2*p, ACB+2*p+1
        bq = B2R + p
        e(f"v_cvt_pk_bf16_f32 v{t}, v{a0}, v{a1}")
        e(f"v_lshlrev_b32 v{x0}, 16, v{t}")
        e(f"v_and_b32 v{x1}, 0xffff0000, v{t}")
        e(f"v_cvt_pk_bf16_f32 v{t}, v{b0}, v{b1}")
        e(f"v_lshlrev_b32 v{y0}, 16, v{t}")
        e(f"v_and_b32 v{y1}, 0xffff0000, v{t}")
        e(f"v_lshlrev_b32 v{b0}, 16, v{bq}")
        e(f"v_and_b32 v{b1}, 0xffff0000, v{bq}")
        e(f"v_add_f32 v{y0}, v{y0}, v{b0}")
        e(f"v_add_f32 v{y1}, v{y1}, v{b1}")
        e(f"v_cvt_pk_bf16_f32 v{t}, v{y0}, v{y1}")
        e(f"v_lshlrev_b32 v{y0}, 16, v{t}")
        e(f"v_and_b32 v{y1}, 0xffff0000, v{t}")
        e(f"v_mul_f32 v{x0}, v{g}, v{x0}")
        e(f"v_mul_f32 v{x1}, v{g}, v{x1}")
        e(f"v_cvt_pk_bf16_f32 v{t}, v{x0}, v{x1}")
        e(f"v_lshlrev_b32 v{x0}, 16, v{t}")
        e(f"v_and_b32 v{x1}, 0xffff0000, v{t}")
        e(f"v_mul_f32 v{y0}, v{omg}, v{y0}")
        e(f"v_mul_f32 v{y1}, v{omg}, v{y1}")
        e(f"v_cvt_pk_bf16_f32 v{t}, v{y0}, v{y1}")
        e(f"v_lshlrev_b32 v{y0}, 16, v{t}")
        e(f"v_and_b32 v{y1}, 0xffff0000, v{t}")
        e(f"v_add_f32 v{x0}, v{x0}, v{y0}")
        e(f"v_add_f32 v{x1}, v{x1}, v{y1}")
        e(f"v_cvt_pk_bf16_f32 v{PK+p}, v{x0}, v{x1}")
    e("s_nop 1")
    e(f"v_permlane32_swap_b32 v{PK+0}, v{PK+2}")
    e(f"v_permlane32_swap_b32 v{PK+1}, v{PK+3}")
    e(f"v_permlane32_swap_b32 v{PK+4}, v{PK+6}")
    e(f"v_permlane32_swap_b32 v{PK+5}, v{PK+7}")
    e(f"v_lshlrev_b32 v{T[10]}, 10, v{T[0]}")
    e(f"v_lshrrev_b32 v{T[11]}, 5, v{ln}")
    e(f"v_lshl_add_u32 v{T[10]}, v{T[11]}, 4, v{T[10]}")
    e(f"s_lshl_b32 s{s_tmp}, s{s_nbw}, 7")
    e(f"s_lshl_b32 s{s_tmp2}, s{s_wn}, 6")
    e(f"s_add_u32 s{s_tmp}, s{s_tmp}, s{s_tmp2}")
    e(f"buffer_store_dwordx4 v[{PK}:{PK+3}], v{T[10]}, s[{sOUT}:{sOUT+3}], s{s_tmp} offen")
    e(f"buffer_store_dwordx4 v[{PK+4}:{PK+7}], v{T[10]}, s[{sOUT}:{sOUT+3}], s{s_tmp} offen offset:32")
    e("s_waitcnt vmcnt(0)")
    e.label(f"{L}_end")
    e("s_endpgm")
    return e.text(), NV
```

```python
import numpy as np
from ref import f2bf, bf2f
S, D, F, H, DH = 2048, 512, 1792, 32, 16
WS_QF = 0x0000000
WS_KV = 0x0200000
WS_HF = 0x0600000
WS_W2F= 0x0D00000
WS_WOF= WS_W2F + 1792*1024
WS_OF = 0x1000000
WS_G  = 0x1200000
WS_KN = 0x1210000
WS_BO = 0x1300000
WS_SIZE = 0x1600000
RHO = np.array([[8*(j>>2) + 4*h + (j&3) for j in range(8)] for h in range(2)])

def frag_rows(M, col0):
    nt = M.shape[0]//32
    out = np.zeros((nt, 64, 8), np.float32)
    Mt = M.reshape(nt, 32, -1)
    for h in range(2):
        out[:, h*32:(h+1)*32, :] = Mt[:, :, col0 + RHO[h]]
    return out

def build_QF(qkv):
    out = np.zeros((H, 64, 64, 8), np.float32)
    for hd in range(H):
        out[hd] = frag_rows(qkv, hd*16)
    return out
def build_KV(qkv):
    out = np.zeros((H, 64, 1024), np.uint16)
    for hd in range(H):
        out[hd, :, :512] = f2bf(frag_rows(qkv, 512 + hd*16)).reshape(64, 512)
        V = qkv[:, 1024 + hd*16: 1024 + hd*16 + 16]
        Vt = V.reshape(64, 32, 16)
        for u in range(2):
            for h in range(2):
                blk = Vt[:, 16*u + RHO[h], :]
                blk = blk.transpose(0, 2, 1)
                o = 512 + u*256 + h*128
                out[hd, :, o:o+128] = f2bf(blk).reshape(64, 128)
    return out
def build_HF(hm):
    out = np.zeros((64, 112, 64, 8), np.float32)
    for ks in range(112):
        out[:, ks] = frag_rows(hm, ks*16)
    return out
def build_WF(w):
    K, N = w.shape
    out = np.zeros((N//32, K//16, 64, 8), np.float32)
    wt = w.reshape(K//16, 16, N//32, 32)
    for h in range(2):
        blk = wt[:, RHO[h], :, :]
        out[:, :, h*32:(h+1)*32, :] = blk.transpose(2, 0, 3, 1)
    return out
def build_OF(o):
    return build_QF(o).transpose(1, 0, 2, 3).copy()
```

```python
import numpy as np
def f2bf(x):
    x = np.ascontiguousarray(x, np.float32)
    u = x.view(np.uint32)
    r = ((u >> 16) & 1) + 0x7fff
    return ((u + r) >> 16).astype(np.uint16)
def bf2f(u):
    return (np.ascontiguousarray(u).astype(np.uint32) << 16).view(np.float32)
def rbf(x):
    return bf2f(f2bf(x))

S, D, F, H, DH = 2048, 512, 1792, 32, 16
def make_inputs(seed=0, scale=1.0):
    rng = np.random.default_rng(seed)
    rn = lambda *s: rng.standard_normal(s).astype(np.float32)
    inp = {}
    inp["x"]    = f2bf(rbf(rn(S, D)) * np.float32(0.05) * scale)
    inp["wqkv"] = f2bf(rbf(rn(D, 3*D)) * np.float32(0.8))
    inp["wo"]   = f2bf(rbf(rn(D, D)) * np.float32(0.1))
    inp["bx"]   = f2bf(rbf(rn(S, D)) * np.float32(0.05))
    inp["w1"]   = f2bf(rbf(rn(D, F)) * np.float32(0.1))
    inp["b1"]   = f2bf(rbf(rn(F)) * np.float32(0.05))
    inp["w2"]   = f2bf(rbf(rn(F, D)) * np.float32(0.05))
    inp["b2"]   = f2bf(rbf(rn(D)) * np.float32(0.05))
    inp["gw"]   = f2bf(rbf(rbf(rn(D)) * np.float32(0.05)) * np.float32(16.0))
    return inp

def reference(inp, exact_scores=False):
    x = bf2f(inp["x"]); wqkv = bf2f(inp["wqkv"]); wo = bf2f(inp["wo"])
    w1 = bf2f(inp["w1"]); b1 = bf2f(inp["b1"]); w2 = bf2f(inp["w2"]); b2 = bf2f(inp["b2"]); gw = bf2f(inp["gw"])
    r = {}
    qkv = rbf(x.astype(np.float64) @ wqkv.astype(np.float64))
    r["qkv"] = qkv
    q = qkv[:, :512].reshape(S, H, DH).transpose(1,0,2)
    k = qkv[:, 512:1024].reshape(S, H, DH).transpose(1,0,2)
    v = qkv[:, 1024:].reshape(S, H, DH).transpose(1,0,2)
    o = np.zeros((H, S, DH), np.float32)
    for h in range(H):
        sc = (q[h].astype(np.float64) @ k[h].astype(np.float64).T).astype(np.float32)
        if not exact_scores: sc = rbf(sc)
        sc = sc * np.float32(0.25)
        m = sc.max(-1, keepdims=True)
        e = np.exp((sc - m).astype(np.float64))
        p = rbf((e / e.sum(-1, keepdims=True)).astype(np.float32))
        o[h] = rbf(p.astype(np.float64) @ v[h].astype(np.float64))
    r["o"] = o.transpose(1,0,2).reshape(S, D)
    a = rbf(r["o"].astype(np.float64) @ wo.astype(np.float64))
    r["a"] = a
    h1 = rbf(x.astype(np.float64) @ w1.astype(np.float64))
    h2 = rbf(h1 + b1)
    rr = np.maximum(h2, 0)
    hh = rbf(rr * rr)
    r["h"] = hh
    h2f = rbf((x.astype(np.float64) @ w1.astype(np.float64) + b1).astype(np.float32))
    r["h_fused"] = rbf(np.maximum(h2f,0)**2)
    bb = rbf(hh.astype(np.float64) @ w2.astype(np.float64))
    bb = rbf(bb + b2)
    r["b"] = bb
    logit = rbf(rbf(x * gw).sum(-1, dtype=np.float32))
    g = rbf(1.0/(1.0+np.exp(-logit.astype(np.float64))).astype(np.float32))
    r["g"] = g
    out = rbf(rbf(g[:,None]*a) + rbf(rbf(1-g)[:,None]*bb))
    r["out"] = out
    return r

if __name__ == "__main__":
    import sys, time
    t=time.time()
    inp = make_inputs(0)
    for k,v in inp.items(): v.tofile(f"in_{k}.bin")
    r = reference(inp)
    np.savez("ref0.npz", **r)
    print("done", time.time()-t, r["out"][0,:8])
```

```python
from asmlib import kernel_begin, kernel_descriptor
from gen_k1 import gen_k1, K1_GRID, K1_LDS
from gen_k2 import gen_k2, K2_GRID, K2_LDS
from gen_k3 import gen_k3, K3_GRID, K3_LDS
NAME = "gated_mix__softmax_full_mha__dense_activation_squared_relu__prompt"
ref = open(f"cdna_kernels/{NAME}.s.ref").read().splitlines()
hdr = []
for l in ref:
    if l.startswith("; @launch"): break
    hdr.append(l)
out = "\n".join(hdr) + "\n"
out += f"; @launch kernel=k1_kernel grid=({K1_GRID},1,1) block=(512,1,1) lds={K1_LDS}\n"
out += f"; @launch kernel=k2_kernel grid=({K2_GRID},1,1) block=(768,1,1) lds={K2_LDS}\n"
out += f"; @launch kernel=k3_kernel grid=({K3_GRID},1,1) block=(256,1,1) lds={K3_LDS}\n"
out += '.amdgcn_target "amdgcn-amd-amdhsa--gfx950"\n.text\n'
for nm, gen in [("k1_kernel", gen_k1), ("k2_kernel", gen_k2), ("k3_kernel", gen_k3)]:
    t, n = gen(nm)
    out += kernel_begin(nm) + t + kernel_descriptor(nm, n, 102)
open(f"cdna_kernels/{NAME}.s", "w").write(out)
print(len(out), "bytes")
```

```python
from layouts import *

class E:
    def __init__(self): self.l = []
    def __call__(self, s): self.l.append("    " + s)
    def label(self, s): self.l.append(s + ":")
    def raw(self, s): self.l.append(s)
    def text(self): return "\n".join(self.l) + "\n"

STAMP1 = False
NTILE = 208
NAUX = 32
K1_GRID = NTILE + NAUX
K1_LDS = 147456
XB = 16384
WBASE = 49152
WB = 32768


def stamp_end(e, L, tag, s_wave, sWS):
    if not STAMP1: return
    e("s_memtime s[66:67]")
    e("s_waitcnt lgkmcnt(0)")
    e("s_sub_u32 s62, s62, s60"); e("s_sub_u32 s64, s64, s60"); e("s_sub_u32 s66, s66, s60")
    e("s_mov_b64 exec, -1")
    e("v_mov_b32 v4, s62"); e("v_mov_b32 v5, s64"); e("v_mov_b32 v6, s66"); e("v_mov_b32 v7, s60")
    e("s_lshl_b32 s68, s2, 3"); e(f"s_add_u32 s68, s68, s{s_wave}"); e("s_lshl_b32 s68, s68, 4"); e(f"s_add_u32 s68, s68, {WS_BO + 0x40000}")
    e("v_mov_b32 v8, 0")
    e("s_mov_b64 exec, 1")
    e(f"buffer_store_dwordx4 v[4:7], v8, s[{sWS}:{sWS+3}], s68 offen")
    e("s_waitcnt vmcnt(0)")

def gen_aux(e, L, s_wave):
    sX, sWS, sGW, sWT = 8, 16, 12, 20
    s_gw, s_row, s_t, s_fb, s_KS, s_magic, s_nbat, s_dst = 31, 32, 33, 34, 35, 36, 37, 43
    s_a, s_b = 38, 39
    e("s_load_dwordx2 s[46:47], s[0:1], 64")
    e("s_load_dwordx2 s[48:49], s[0:1], 48")
    e("s_load_dwordx2 s[50:51], s[0:1], 16")
    e(f"s_sub_u32 s{s_gw}, s2, {NTILE}")
    e(f"s_lshl_b32 s{s_gw}, s{s_gw}, 3")
    e(f"s_add_u32 s{s_gw}, s{s_gw}, s{s_wave}")
    e(f"s_mov_b32 s{sX}, s4"); e(f"s_and_b32 s{sX+1}, s5, 0xffff"); e(f"s_mov_b32 s{sX+2}, {S*D*2}"); e(f"s_mov_b32 s{sX+3}, 0x20000")
    e(f"s_mov_b32 s{sWS}, s28"); e(f"s_and_b32 s{sWS+1}, s29, 0xffff"); e(f"s_mov_b32 s{sWS+2}, {WS_SIZE}"); e(f"s_mov_b32 s{sWS+3}, 0x20000")
    e("s_waitcnt lgkmcnt(0)")
    e(f"s_mov_b32 s{sGW}, s46"); e(f"s_and_b32 s{sGW+1}, s47, 0xffff"); e(f"s_mov_b32 s{sGW+2}, 1024"); e(f"s_mov_b32 s{sGW+3}, 0x20000")
    e(f"s_cmp_lt_u32 s{s_gw}, 224")
    e(f"s_cbranch_scc1 {L}_aux_w2")
    e(f"s_mov_b32 s{sWT}, s50"); e(f"s_and_b32 s{sWT+1}, s51, 0xffff"); e(f"s_mov_b32 s{sWT+2}, {512*512*2}")
    e(f"s_sub_u32 s{s_fb}, s{s_gw}, 224")
    e(f"s_lshl_b32 s{s_fb}, s{s_fb}, 4")
    e(f"s_mov_b32 s{s_KS}, 32"); e(f"s_mov_b32 s{s_magic}, {1<<27}"); e(f"s_mov_b32 s{s_nbat}, 2"); e(f"s_mov_b32 s{s_dst}, 1792")
    e(f"s_branch {L}_aux_wsel")
    e.label(f"{L}_aux_w2")
    e(f"s_mov_b32 s{sWT}, s48"); e(f"s_and_b32 s{sWT+1}, s49, 0xffff"); e(f"s_mov_b32 s{sWT+2}, {1792*512*2}")
    e(f"s_lshl_b32 s{s_fb}, s{s_gw}, 3")
    e(f"s_mov_b32 s{s_KS}, 112"); e(f"s_mov_b32 s{s_magic}, {(2**32 + 111)//112}"); e(f"s_mov_b32 s{s_nbat}, 1"); e(f"s_mov_b32 s{s_dst}, 0")
    e.label(f"{L}_aux_wsel")
    e(f"s_mov_b32 s{sWT+3}, 0x20000")
    e("v_lshrrev_b32 v2, 5, v1")
    e("v_lshlrev_b32 v2, 12, v2")
    e("v_and_b32 v3, 31, v1")
    e("v_lshl_add_u32 v2, v3, 1, v2")
    e("v_add_u32 v3, 8192, v2")
    e("v_lshlrev_b32 v4, 4, v1")
    FR = 64
    e.label(f"{L}_aux_batch")
    for t in range(8):
        e(f"s_add_u32 s{s_a}, s{s_fb}, {t}")
        e(f"s_mul_hi_u32 s{s_b}, s{s_a}, s{s_magic}")
        e(f"s_mul_i32 s{s_t}, s{s_b}, s{s_KS}")
        e(f"s_sub_u32 s{s_t}, s{s_a}, s{s_t}")
        e(f"s_lshl_b32 s{s_t}, s{s_t}, 14")
        e(f"s_lshl_b32 s{s_b}, s{s_b}, 6")
        e(f"s_add_u32 s{s_t}, s{s_t}, s{s_b}")
        for j in range(8):
            vo = 2 if (j >> 2) == 0 else 3
            d = FR + t*8 + (j & 1)*4 + (j >> 1)
            e(f"buffer_load_ushort v{d}, v{vo}, s[{sWT}:{sWT+3}], s{s_t} offen offset:{(j&3)*1024}")
    e("s_waitcnt vmcnt(0)")
    for t in range(8):
        for p in range(4):
            e(f"v_lshl_or_b32 v{FR+t*8+p}, v{FR+t*8+4+p}, 16, v{FR+t*8+p}")
    for t in range(8):
        e(f"s_add_u32 s{s_a}, s{s_fb}, s{s_dst}")
        e(f"s_add_u32 s{s_a}, s{s_a}, {t}")
        e(f"s_lshl_b32 s{s_a}, s{s_a}, 10")
        e(f"s_add_u32 s{s_a}, s{s_a}, {WS_W2F}")
        e(f"buffer_store_dwordx4 v[{FR+t*8}:{FR+t*8+3}], v4, s[{sWS}:{sWS+3}], s{s_a} offen")
    e(f"s_add_u32 s{s_fb}, s{s_fb}, 8")
    e(f"s_sub_u32 s{s_nbat}, s{s_nbat}, 1")
    e(f"s_cmp_lg_u32 s{s_nbat}, 0")
    e("s_waitcnt vmcnt(0)")
    e(f"s_cbranch_scc1 {L}_aux_batch")
    e(f"buffer_load_dwordx4 v[8:11], v4, s[{sGW}:{sGW+3}], 0 offen")
    e(f"s_lshl_b32 s{s_row}, s{s_gw}, 13")
    e(f"s_add_u32 s{s_a}, s{s_row}, 4096")
    XR = 32
    for r in range(8):
        so = s_row if r < 4 else s_a
        e(f"buffer_load_dwordx4 v[{XR+4*r}:{XR+4*r+3}], v4, s[{sX}:{sX+3}], s{so} offen offset:{(r&3)*1024}")
    e("s_waitcnt vmcnt(0)")
    GL = 12
    for p in range(4):
        e(f"v_lshlrev_b32 v{GL+2*p}, 16, v{8+p}")
        e(f"v_and_b32 v{GL+2*p+1}, 0xffff0000, v{8+p}")
    SUM = 20
    for r in range(8):
        e(f"v_mov_b32 v{SUM+r}, 0")
        for p in range(4):
            x = XR+4*r+p
            e(f"v_lshlrev_b32 v5, 16, v{x}")
            e(f"v_and_b32 v6, 0xffff0000, v{x}")
            e(f"v_mul_f32 v5, v5, v{GL+2*p}")
            e(f"v_mul_f32 v6, v6, v{GL+2*p+1}")
            e(f"v_cvt_pk_bf16_f32 v7, v5, v6")
            e(f"v_lshlrev_b32 v5, 16, v7")
            e(f"v_and_b32 v6, 0xffff0000, v7")
            e(f"v_add_f32 v{SUM+r}, v{SUM+r}, v5")
            e(f"v_add_f32 v{SUM+r}, v{SUM+r}, v6")
    for sw in [0x041F, 0x081F, 0x101F, 0x201F, 0x401F]:
        for r in range(8):
            e(f"ds_swizzle_b32 v{XR+r}, v{SUM+r} offset:{sw}")
        e("s_waitcnt lgkmcnt(0)")
        for r in range(8):
            e(f"v_add_f32 v{SUM+r}, v{SUM+r}, v{XR+r}")
    e("v_mov_b32 v5, 0")
    e("v_mov_b32 v6, 0")
    e("s_nop 1")
    for r in range(8):
        e(f"v_readlane_b32 s{s_a}, v{SUM+r}, 0")
        e(f"v_readlane_b32 s{s_b}, v{SUM+r}, 32")
        e("s_nop 3")
        e(f"v_writelane_b32 v5, s{s_a}, {r}")
        e(f"v_writelane_b32 v6, s{s_b}, {r}")
    e("s_nop 1")
    e("v_add_f32 v5, v5, v6")
    e("v_cvt_pk_bf16_f32 v5, v5, v5")
    e("v_lshlrev_b32 v5, 16, v5")
    e("v_mul_f32 v6, 0xbfb8aa3b, v5")
    e("v_exp_f32 v6, v6")
    e("s_nop 0")
    e("v_add_f32 v6, 1.0, v6")
    e("v_rcp_f32 v6, v6")
    e("s_nop 0")
    e("v_cvt_pk_bf16_f32 v6, v6, v6")
    e("v_lshlrev_b32 v6, 16, v6")
    e(f"s_lshl_b32 s{s_a}, s{s_gw}, 5")
    e(f"s_add_u32 s{s_a}, s{s_a}, {WS_G}")
    e("v_lshlrev_b32 v7, 2, v1")
    e("s_mov_b64 exec, 0xff")
    e(f"buffer_store_dword v6, v7, s[{sWS}:{sWS+3}], s{s_a} offen")
    e("s_waitcnt vmcnt(0)")
    stamp_end(e, L, "aux", s_wave, sWS)
    e("s_endpgm")


def gen_k1(name="k1_kernel"):
    e = E()
    L = name
    sX, sW, sWS, sB1 = 8, 12, 16, 20
    s_wave, s_mb, s_nt, s_rs = 30, 31, 32, 33
    s_xoff, s_woff, s_m0x, s_m0w = 34, 35, 36, 37
    s_tmp, s_tmp2, s_cnt = 38, 39, 40
    v_lane = 1
    v_dx0, v_dx1 = 2, 3
    v_dw = [4, 5, 6, 7]
    v_ax = [8, 9, 10, 11]
    v_aw = [[12, 13], [52, 53], [54, 55]]
    v_t = [14, 15, 16, 17, 18, 19]
    XF = [[20, 24], [28, 32]]
    WF = [[36, 40], [44, 48]]
    ACC = 64
    VB = 128
    def acc(tb, nb): return ACC + (tb*2+nb)*16

    e(f"s_cmp_ge_u32 s2, {K1_GRID}")
    e(f"s_cbranch_scc1 {L}_end")
    if STAMP1: e("s_memtime s[60:61]")
    e("s_load_dwordx2 s[4:5], s[0:1], 0")
    e("s_load_dwordx2 s[6:7], s[0:1], 8")
    e("s_load_dwordx2 s[24:25], s[0:1], 32")
    e("s_load_dwordx2 s[26:27], s[0:1], 40")
    e("s_load_dwordx2 s[28:29], s[0:1], 88")
    e(f"v_and_b32 v{v_lane}, 63, v0")
    e("v_lshrrev_b32 v2, 6, v0")
    e("s_nop 0")
    e(f"v_readfirstlane_b32 s{s_wave}, v2")
    e("s_waitcnt lgkmcnt(0)")
    e(f"s_cmp_ge_u32 s2, {NTILE}")
    e(f"s_cbranch_scc1 {L}_aux")
    e(f"s_and_b32 s{s_tmp}, s2, 7")
    e(f"s_lshr_b32 s{s_tmp2}, s2, 3")
    e(f"s_cmp_lt_u32 s{s_tmp2}, 24")
    e(f"s_cbranch_scc1 {L}_map_main")
    e(f"s_mov_b32 s{s_nt}, 12")
    e(f"s_lshl_b32 s{s_mb}, s{s_tmp}, 1")
    e(f"s_add_u32 s{s_mb}, s{s_mb}, s{s_tmp2}")
    e(f"s_sub_u32 s{s_mb}, s{s_mb}, 24")
    e(f"s_branch {L}_map_done")
    e.label(f"{L}_map_main")
    e(f"s_and_b32 s{s_mb}, s{s_tmp}, 1")
    e(f"s_lshl_b32 s{s_mb}, s{s_mb}, 3")
    e(f"s_and_b32 s{s_nt}, s{s_tmp2}, 7")
    e(f"s_add_u32 s{s_mb}, s{s_mb}, s{s_nt}")
    e(f"s_lshr_b32 s{s_tmp}, s{s_tmp}, 1")
    e(f"s_mul_i32 s{s_tmp}, s{s_tmp}, 3")
    e(f"s_lshr_b32 s{s_nt}, s{s_tmp2}, 3")
    e(f"s_add_u32 s{s_nt}, s{s_nt}, s{s_tmp}")
    e.label(f"{L}_map_done")
    e(f"s_mov_b32 s{sX}, s4"); e(f"s_and_b32 s{sX+1}, s5, 0xffff"); e(f"s_mov_b32 s{sX+2}, {S*D*2}"); e(f"s_mov_b32 s{sX+3}, 0x20000")
    e(f"s_mov_b32 s{sWS}, s28"); e(f"s_and_b32 s{sWS+1}, s29, 0xffff"); e(f"s_mov_b32 s{sWS+2}, {WS_SIZE}"); e(f"s_mov_b32 s{sWS+3}, 0x20000")
    e(f"s_cmp_lt_u32 s{s_nt}, 6")
    e(f"s_cbranch_scc1 {L}_isqkv")
    e(f"s_sub_u32 s{s_tmp}, s{s_nt}, 6")
    e(f"s_lshl_b32 s{s_tmp}, s{s_tmp}, 9")
    e(f"s_add_u32 s{sW}, s24, s{s_tmp}")
    e(f"s_addc_u32 s{sW+1}, s25, 0")
    e(f"s_and_b32 s{sW+1}, s{sW+1}, 0xffff")
    e(f"s_sub_u32 s{sW+2}, {512*3584}, s{s_tmp}")
    e(f"s_mov_b32 s{s_rs}, 3584")
    e(f"s_branch {L}_wsel")
    e.label(f"{L}_isqkv")
    e(f"s_lshl_b32 s{s_tmp}, s{s_nt}, 9")
    e(f"s_add_u32 s{sW}, s6, s{s_tmp}")
    e(f"s_addc_u32 s{sW+1}, s7, 0")
    e(f"s_and_b32 s{sW+1}, s{sW+1}, 0xffff")
    e(f"s_sub_u32 s{sW+2}, {512*3072}, s{s_tmp}")
    e(f"s_mov_b32 s{s_rs}, 3072")
    e.label(f"{L}_wsel")
    e(f"s_mov_b32 s{sW+3}, 0x20000")
    ln = v_lane
    t0, t1, t2, t3, t4, t5 = v_t
    e(f"v_lshrrev_b32 v{t0}, 3, v{ln}")
    e(f"v_lshlrev_b32 v{t0}, 10, v{t0}")
    e(f"v_lshrrev_b32 v{t1}, 4, v{ln}")
    e(f"v_and_b32 v{t2}, 7, v{ln}")
    e(f"v_xor_b32 v{t3}, v{t2}, v{t1}")
    e(f"v_lshl_add_u32 v{v_dx0}, v{t3}, 4, v{t0}")
    e(f"v_add_u32 v{t1}, 4, v{t1}")
    e(f"v_xor_b32 v{t3}, v{t2}, v{t1}")
    e(f"v_lshl_add_u32 v{v_dx1}, v{t3}, 4, v{t0}")
    e(f"v_add_u32 v{v_dx1}, 8192, v{v_dx1}")
    e(f"v_lshrrev_b32 v{t0}, 5, v{ln}")
    e(f"v_mul_lo_u32 v{t1}, v{t0}, s{s_rs}")
    e(f"v_and_b32 v{t2}, 31, v{ln}")
    for jj in range(4):
        e(f"v_add_u32 v{t3}, {(2*jj)&3}, v{t0}")
        e(f"v_lshlrev_b32 v{t3}, 2, v{t3}")
        e(f"v_xor_b32 v{t3}, v{t2}, v{t3}")
        e(f"v_lshl_add_u32 v{v_dw[jj]}, v{t3}, 4, v{t1}")
        if jj:
            e(f"s_mul_i32 s{s_tmp}, s{s_rs}, {2*jj}")
            e(f"v_add_u32 v{v_dw[jj]}, s{s_tmp}, v{v_dw[jj]}")
    e(f"s_lshl_b32 s{s_xoff}, s{s_mb}, 7")
    e(f"s_lshl_b32 s{s_tmp}, s{s_wave}, 4")
    e(f"s_add_u32 s{s_xoff}, s{s_xoff}, s{s_tmp}")
    e(f"s_lshl_b32 s{s_xoff}, s{s_xoff}, 10")
    e(f"s_lshl_b32 s{s_tmp}, s{s_wave}, 3")
    e(f"s_mul_i32 s{s_woff}, s{s_tmp}, s{s_rs}")
    e(f"s_lshl_b32 s{s_m0x}, s{s_wave}, 11")
    e(f"s_lshl_b32 s{s_m0w}, s{s_wave}, 12")
    e(f"s_add_u32 s{s_m0w}, s{s_m0w}, {WBASE}")

    def issue_dma(buf):
        base = buf*XB
        e(f"s_add_u32 m0, s{s_m0x}, {base}")
        e("s_nop 0")
        e(f"buffer_load_dwordx4 v{v_dx0}, s[{sX}:{sX+3}], s{s_xoff} offen lds")
        e(f"s_add_u32 m0, s{s_m0x}, {base+1024}")
        e("s_nop 0")
        e(f"buffer_load_dwordx4 v{v_dx1}, s[{sX}:{sX+3}], s{s_xoff} offen lds")
        base = buf*WB
        for jj in range(4):
            e(f"s_add_u32 m0, s{s_m0w}, {base+jj*1024}")
            e("s_nop 0")
            e(f"buffer_load_dwordx4 v{v_dw[jj]}, s[{sW}:{sW+3}], s{s_woff} offen lds")
        e(f"s_add_u32 s{s_xoff}, s{s_xoff}, 128")
        e(f"s_lshl_b32 s{s_tmp}, s{s_rs}, 6")
        e(f"s_add_u32 s{s_woff}, s{s_woff}, s{s_tmp}")

    issue_dma(0)
    issue_dma(1)

    wm_expr = None
    s_wm, s_wn = 41, 42
    e(f"s_lshr_b32 s{s_wm}, s{s_wave}, 2")
    e(f"s_and_b32 s{s_wn}, s{s_wave}, 3")
    e(f"v_and_b32 v{t0}, 31, v{ln}")
    e(f"s_lshl_b32 s{s_tmp}, s{s_wm}, 6")
    e(f"v_add_u32 v{t0}, s{s_tmp}, v{t0}")
    e(f"v_lshrrev_b32 v{t1}, 1, v{t0}")
    e(f"v_and_b32 v{t1}, 7, v{t1}")
    e(f"v_lshrrev_b32 v{t2}, 5, v{ln}")
    e(f"v_xor_b32 v{t1}, v{t1}, v{t2}")
    e(f"v_lshlrev_b32 v{t1}, 4, v{t1}")
    e(f"v_lshl_add_u32 v{v_ax[0]}, v{t0}, 7, v{t1}")
    for ks in range(1, 4):
        e(f"v_xor_b32 v{v_ax[ks]}, {ks<<5}, v{v_ax[0]}")
    e(f"v_lshrrev_b32 v{t0}, 2, v{ln}")
    e(f"v_and_b32 v{t0}, 3, v{t0}")
    e(f"v_lshrrev_b32 v{t1}, 5, v{ln}")
    e(f"v_lshl_add_u32 v{t1}, v{t1}, 3, v{t0}")
    e(f"v_lshlrev_b32 v{t1}, 9, v{t1}")
    e(f"v_add_u32 v{t1}, {WBASE}, v{t1}")
    e(f"v_and_b32 v{t2}, 1, v{ln}")
    e(f"v_lshl_add_u32 v{t1}, v{t2}, 3, v{t1}")
    e(f"v_lshrrev_b32 v{t2}, 4, v{ln}")
    e(f"v_and_b32 v{t2}, 1, v{t2}")
    e(f"v_lshlrev_b32 v{t2}, 1, v{t2}")
    e(f"v_lshrrev_b32 v{t3}, 1, v{ln}")
    e(f"v_and_b32 v{t3}, 1, v{t3}")
    e(f"v_add_u32 v{t2}, v{t2}, v{t3}")
    e(f"s_lshl_b32 s{s_tmp}, s{s_wn}, 3")
    e(f"v_add_u32 v{t2}, s{s_tmp}, v{t2}")
    e(f"v_lshlrev_b32 v{t3}, 2, v{t0}")
    for nb in range(2):
        e(f"v_add_u32 v{t4}, {nb*4}, v{t2}")
        e(f"v_xor_b32 v{t4}, v{t4}, v{t3}")
        e(f"v_lshl_add_u32 v{v_aw[0][nb]}, v{t4}, 4, v{t1}")
        e(f"v_add_u32 v{v_aw[1][nb]}, {WB}, v{v_aw[0][nb]}")
        e(f"v_add_u32 v{v_aw[2][nb]}, {2*WB}, v{v_aw[0][nb]}")

    e(f"s_cmp_ge_u32 s{s_nt}, 6")
    e(f"s_cbranch_scc1 {L}_initbias")
    for i in range(64): e(f"v_mov_b32 v{ACC+i}, 0")
    e(f"s_branch {L}_initdone")
    e.label(f"{L}_initbias")
    e(f"s_mov_b32 s{sB1}, s26"); e(f"s_and_b32 s{sB1+1}, s27, 0xffff"); e(f"s_mov_b32 s{sB1+2}, {F*2}"); e(f"s_mov_b32 s{sB1+3}, 0x20000")
    e(f"s_sub_u32 s{s_tmp}, s{s_nt}, 6")
    e(f"s_lshl_b32 s{s_tmp}, s{s_tmp}, 8")
    e(f"s_lshl_b32 s{s_tmp2}, s{s_wn}, 6")
    e(f"s_add_u32 s{s_tmp}, s{s_tmp}, s{s_tmp2}")
    e(f"s_lshl_b32 s{s_tmp}, s{s_tmp}, 1")
    e(f"v_lshrrev_b32 v{t0}, 5, v{ln}")
    e(f"v_lshlrev_b32 v{t0}, 3, v{t0}")
    for nb in range(2):
        for a in range(4):
            e(f"buffer_load_dwordx2 v[{VB+nb*8+a*2}:{VB+nb*8+a*2+1}], v{t0}, s[{sB1}:{sB1+3}], s{s_tmp} offen offset:{nb*64+a*16}")
    e("s_waitcnt vmcnt(0)")
    for nb in range(2):
        for a in range(4):
            for dq in range(2):
                src = VB+nb*8+a*2+dq
                for tb in range(2):
                    d = acc(tb, nb) + 4*a + 2*dq
                    e(f"v_lshlrev_b32 v{d}, 16, v{src}")
                    e(f"v_and_b32 v{d+1}, 0xffff0000, v{src}")
    e.label(f"{L}_initdone")
    e(f"s_cmp_eq_u32 s{s_nt}, 4")
    e(f"s_cbranch_scc1 {L}_loopD")
    e(f"s_cmp_eq_u32 s{s_nt}, 5")
    e(f"s_cbranch_scc1 {L}_loopD")

    def reads(ks, fb, buf):
        for tb in range(2):
            e(f"ds_read_b128 v[{XF[fb][tb]}:{XF[fb][tb]+3}], v{v_ax[ks]} offset:{buf*XB + tb*4096}")
        for nb in range(2):
            f = WF[fb][nb]
            e(f"ds_read_b64_tr_b16 v[{f}:{f+1}], v{v_aw[buf][nb]} offset:{ks*8192}")
            e(f"ds_read_b64_tr_b16 v[{f+2}:{f+3}], v{v_aw[buf][nb]} offset:{ks*8192+2048}")

    def main_loop(tag, dprime):
        def mfmas(fb):
            for tb in range(2):
                for nb in range(2):
                    a = acc(tb, nb)
                    xf = XF[fb][tb]; wf = WF[fb][nb]
                    if dprime:
                        e(f"v_mfma_f32_32x32x16_bf16 v[{a}:{a+15}], v[{wf}:{wf+3}], v[{xf}:{xf+3}], v[{a}:{a+15}]")
                    else:
                        e(f"v_mfma_f32_32x32x16_bf16 v[{a}:{a+15}], v[{xf}:{xf+3}], v[{wf}:{wf+3}], v[{a}:{a+15}]")
        e("s_waitcnt vmcnt(6)")
        e("s_barrier")
        if STAMP1: e("s_memtime s[62:63]")
        issue_dma(2)
        reads(0, 0, 0)
        for c in range(8):
            buf = c % 3
            for ks in range(4):
                fb = ks & 1
                if ks < 3:
                    reads(ks+1, fb ^ 1, buf)
                    e("s_waitcnt lgkmcnt(6)")
                    mfmas(fb)
                else:
                    e("s_waitcnt lgkmcnt(0)")
                    if c < 7:
                        e(f"s_waitcnt vmcnt({6 if c < 6 else 0})")
                        e("s_barrier")
                        if c + 3 < 8: issue_dma(buf)
                        reads(0, fb ^ 1, (c+1) % 3)
                    mfmas(fb)
        e("s_nop 15")
        e("s_nop 3")
        if STAMP1: e("s_memtime s[64:65]")

    main_loop("Dp", True)
    e(f"s_cmp_ge_u32 s{s_nt}, 6")
    e(f"s_cbranch_scc1 {L}_epi_ffn")
    e(f"s_and_b32 s{s_tmp}, s{s_nt}, 1")
    e(f"s_lshl_b32 s{s_tmp}, s{s_tmp}, 4")
    e(f"s_lshl_b32 s{s_tmp2}, s{s_wn}, 2")
    e(f"s_add_u32 s{s_tmp}, s{s_tmp}, s{s_tmp2}")
    e(f"s_lshl_b32 s{s_tmp2}, s{s_mb}, 2")
    e(f"s_lshl_b32 s{s_cnt}, s{s_wm}, 1")
    e(f"s_add_u32 s{s_tmp2}, s{s_tmp2}, s{s_cnt}")
    s_hs, s_ts, s_base = 43, 44, 45
    e(f"s_cmp_lt_u32 s{s_nt}, 2")
    e(f"s_cbranch_scc1 {L}_epi_q")
    e(f"s_lshl_b32 s{s_tmp}, s{s_tmp}, 17")
    e(f"s_lshl_b32 s{s_tmp2}, s{s_tmp2}, 11")
    e(f"s_add_u32 s{s_base}, s{s_tmp}, s{s_tmp2}")
    e(f"s_add_u32 s{s_base}, s{s_base}, {WS_KV}")
    e(f"s_mov_b32 s{s_hs}, 131072")
    e(f"s_mov_b32 s{s_ts}, 2048")
    e(f"s_branch {L}_epi_qk_store")
    e.label(f"{L}_epi_q")
    e(f"s_lshl_b32 s{s_tmp}, s{s_tmp}, 16")
    e(f"s_lshl_b32 s{s_tmp2}, s{s_tmp2}, 10")
    e(f"s_add_u32 s{s_base}, s{s_tmp}, s{s_tmp2}")
    e(f"s_add_u32 s{s_base}, s{s_base}, {WS_QF}")
    e(f"s_mov_b32 s{s_hs}, 65536")
    e(f"s_mov_b32 s{s_ts}, 1024")
    e.label(f"{L}_epi_qk_store")
    e(f"v_lshlrev_b32 v{t0}, 4, v{ln}")
    for tb in range(2):
        for nb in range(2):
            for hs in range(2):
                a = acc(tb, nb) + hs*8
                d = VB + ((tb*2+nb)*2+hs)*4
                for p in range(4):
                    e(f"v_cvt_pk_bf16_f32 v{d+p}, v{a+2*p}, v{a+2*p+1}")
                e(f"s_mul_i32 s{s_tmp}, s{s_hs}, {nb*2+hs}")
                e(f"s_add_u32 s{s_tmp}, s{s_tmp}, s{s_base}")
                if tb: e(f"s_add_u32 s{s_tmp}, s{s_tmp}, s{s_ts}")
                e(f"buffer_store_dwordx4 v[{d}:{d+3}], v{t0}, s[{sWS}:{sWS+3}], s{s_tmp} offen")
    e(f"s_cmp_lt_u32 s{s_nt}, 2")
    e(f"s_cbranch_scc1 {L}_epi_qk_done")
    MX = ACC
    tA, tB = ACC+8, ACC+9
    for hh in range(4): e(f"v_mov_b32 v{MX+hh}, 0")
    for tb in range(2):
        for nb in range(2):
            for hs in range(2):
                d = VB + ((tb*2+nb)*2+hs)*4
                e(f"v_mov_b32 v{tA}, 0")
                for p in range(4):
                    e(f"v_dot2_f32_bf16 v{tA}, v{d+p}, v{d+p}, v{tA}")
                e("s_nop 2")
                e(f"v_mov_b32 v{tB}, v{tA}")
                e("s_nop 1")
                e(f"v_permlane32_swap_b32 v{tA}, v{tB}")
                e(f"v_add_f32 v{tA}, v{tA}, v{tB}")
                e(f"v_max_f32 v{MX+nb*2+hs}, v{MX+nb*2+hs}, v{tA}")
    for sw in [0x041F, 0x081F, 0x101F, 0x201F, 0x401F]:
        for hh in range(4):
            e(f"ds_swizzle_b32 v{ACC+12+hh}, v{MX+hh} offset:{sw}")
        e("s_waitcnt lgkmcnt(0)")
        for hh in range(4):
            e(f"v_max_f32 v{MX+hh}, v{MX+hh}, v{ACC+12+hh}")
    e(f"s_and_b32 s{s_tmp}, s{s_nt}, 1")
    e(f"s_lshl_b32 s{s_tmp}, s{s_tmp}, 4")
    e(f"s_lshl_b32 s{s_tmp2}, s{s_wn}, 2")
    e(f"s_add_u32 s{s_tmp}, s{s_tmp}, s{s_tmp2}")
    e(f"s_lshl_b32 s{s_tmp}, s{s_tmp}, 7")
    e(f"s_lshl_b32 s{s_tmp2}, s{s_mb}, 1")
    e(f"s_add_u32 s{s_tmp2}, s{s_tmp2}, s{s_wm}")
    e(f"s_lshl_b32 s{s_tmp2}, s{s_tmp2}, 2")
    e(f"s_add_u32 s{s_tmp}, s{s_tmp}, s{s_tmp2}")
    e(f"s_add_u32 s{s_tmp}, s{s_tmp}, {WS_KN}")
    e(f"v_mov_b32 v{tA}, 0")
    e("s_mov_b64 exec, 1")
    for hh in range(4):
        e(f"buffer_store_dword v{MX+hh}, v{tA}, s[{sWS}:{sWS+3}], s{s_tmp} offen offset:{hh*128}")
    e.label(f"{L}_epi_qk_done")
    e("s_waitcnt vmcnt(0)")
    stamp_end(e, L, "qk", s_wave, sWS)
    e("s_endpgm")

    e.label(f"{L}_epi_ffn")
    e(f"s_sub_u32 s{s_tmp}, s{s_nt}, 6")
    e(f"s_lshl_b32 s{s_tmp}, s{s_tmp}, 4")
    e(f"s_lshl_b32 s{s_tmp2}, s{s_wn}, 2")
    e(f"s_add_u32 s{s_tmp}, s{s_tmp}, s{s_tmp2}")
    e(f"s_lshl_b32 s{s_tmp2}, s{s_mb}, 2")
    e(f"s_lshl_b32 s{s_cnt}, s{s_wm}, 1")
    e(f"s_add_u32 s{s_tmp2}, s{s_tmp2}, s{s_cnt}")
    e(f"s_mul_i32 s{s_tmp2}, s{s_tmp2}, 112")
    e(f"s_add_u32 s{s_tmp}, s{s_tmp}, s{s_tmp2}")
    e(f"s_lshl_b32 s{s_tmp}, s{s_tmp}, 10")
    e(f"s_add_u32 s{s_base}, s{s_tmp}, {WS_HF}")
    e(f"v_lshlrev_b32 v{t0}, 4, v{ln}")
    for tb in range(2):
        for nb in range(2):
            for hs in range(2):
                a = acc(tb, nb) + hs*8
                d = VB + ((tb*2+nb)*2+hs)*4
                for p in range(4):
                    x0, x1 = a+2*p, a+2*p+1
                    e(f"v_cvt_pk_bf16_f32 v{d+p}, v{x0}, v{x1}")
                    e(f"v_lshlrev_b32 v{x0}, 16, v{d+p}")
                    e(f"v_and_b32 v{x1}, 0xffff0000, v{d+p}")
                    e(f"v_max_f32 v{x0}, 0, v{x0}")
                    e(f"v_max_f32 v{x1}, 0, v{x1}")
                    e(f"v_mul_f32 v{x0}, v{x0}, v{x0}")
                    e(f"v_mul_f32 v{x1}, v{x1}, v{x1}")
                    e(f"v_cvt_pk_bf16_f32 v{d+p}, v{x0}, v{x1}")
                off = (nb*2+hs)*1024 + tb*112*1024
                e(f"s_add_u32 s{s_tmp}, s{s_base}, {off}")
                e(f"buffer_store_dwordx4 v[{d}:{d+3}], v{t0}, s[{sWS}:{sWS+3}], s{s_tmp} offen")
    e("s_waitcnt vmcnt(0)")
    stamp_end(e, L, "ffn", s_wave, sWS)
    e("s_endpgm")

    e.label(f"{L}_loopD")
    main_loop("D", False)
    e(f"s_sub_u32 s{s_tmp}, s{s_nt}, 4")
    e(f"s_lshl_b32 s{s_tmp}, s{s_tmp}, 4")
    e(f"s_lshl_b32 s{s_tmp2}, s{s_wn}, 2")
    e(f"s_add_u32 s{s_tmp}, s{s_tmp}, s{s_tmp2}")
    e(f"s_lshl_b32 s{s_tmp}, s{s_tmp}, 17")
    e(f"s_lshl_b32 s{s_tmp2}, s{s_mb}, 2")
    e(f"s_lshl_b32 s{s_cnt}, s{s_wm}, 1")
    e(f"s_add_u32 s{s_tmp2}, s{s_tmp2}, s{s_cnt}")
    e(f"s_lshl_b32 s{s_tmp2}, s{s_tmp2}, 11")
    e(f"s_add_u32 s{s_base}, s{s_tmp}, s{s_tmp2}")
    e(f"s_add_u32 s{s_base}, s{s_base}, {WS_KV+1024}")
    e(f"v_lshrrev_b32 v{t0}, 4, v{ln}")
    e(f"v_and_b32 v{t0}, 1, v{t0}")
    e(f"v_lshlrev_b32 v{t0}, 17, v{t0}")
    e(f"v_lshrrev_b32 v{t1}, 5, v{ln}")
    e(f"v_lshl_add_u32 v{t0}, v{t1}, 8, v{t0}")
    e(f"v_and_b32 v{t1}, 15, v{ln}")
    e(f"v_lshl_add_u32 v{t0}, v{t1}, 4, v{t0}")
    for tb in range(2):
        for nb in range(2):
            for u in range(2):
                a = acc(tb, nb) + u*8
                d = VB + ((tb*2+nb)*2+u)*4
                for p in range(4):
                    e(f"v_cvt_pk_bf16_f32 v{d+p}, v{a+2*p}, v{a+2*p+1}")
                off = nb*2*131072 + tb*2048 + u*512
                e(f"s_add_u32 s{s_tmp}, s{s_base}, {off}")
                e(f"buffer_store_dwordx4 v[{d}:{d+3}], v{t0}, s[{sWS}:{sWS+3}], s{s_tmp} offen")
    e("s_waitcnt vmcnt(0)")
    stamp_end(e, L, "v", s_wave, sWS)
    e("s_endpgm")

    e.label(f"{L}_aux")
    gen_aux(e, L, s_wave)
    e.label(f"{L}_end")
    e("s_endpgm")
    return e.text(), 160

if __name__ == "__main__":
    from asmlib import *
    txt, nv = gen_k1()
    out = HEADER + kernel_begin("k1_kernel") + txt + kernel_descriptor("k1_kernel", nv, 64) + metadata([("k1_kernel", nv, 64, 512)])
    open("k1.s", "w").write(out)
```

```python
from layouts import *
from gen_k1 import E

DEBUG = False
STAMP = False
K2_GRID = 256
K2_LDS = 139264
ONES = 131072
C_SCALE = 0x3eb8aa3b

def gen_k2(name="k2_kernel"):
    e = E(); L = name
    sWS = 8
    s_wave, s_head, s_T, s_kvb, s_off, s_tmp, s_tmp2, s_cnt, s_flag, s_kmax = 12, 13, 14, 15, 16, 17, 18, 19, 20, 21
    ln = 1
    QH, QL = 4, 8
    MB = 16
    SA, SB = 32, 48
    OA = 64
    KF = [80, 84]
    VF = [[88, 92], [96, 100]]
    v_ak, v_av, v_sv = 2, 3, 12
    T = list(range(104, 120))
    NV = 120
    def mfma(d, a, b, c):
        cs = f"v[{c}:{c+15}]" if isinstance(c, int) else c
        e(f"v_mfma_f32_32x32x16_bf16 v[{d}:{d+15}], v[{a}:{a+3}], v[{b}:{b+3}], {cs}")
    e(f"s_cmp_ge_u32 s2, {K2_GRID}")
    e(f"s_cbranch_scc1 {L}_end")
    if STAMP: e("s_memtime s[40:41]")
    e("s_load_dwordx2 s[4:5], s[0:1], 88")
    e(f"v_and_b32 v{ln}, 63, v0")
    e("v_lshrrev_b32 v2, 6, v0")
    e("s_nop 0")
    e(f"v_readfirstlane_b32 s{s_wave}, v2")
    e(f"s_and_b32 s{s_head}, s2, 7")
    e(f"s_lshl_b32 s{s_head}, s{s_head}, 2")
    e(f"s_lshr_b32 s{s_tmp}, s2, 6")
    e(f"s_add_u32 s{s_head}, s{s_head}, s{s_tmp}")
    e(f"s_lshr_b32 s{s_tmp}, s2, 3")
    e(f"s_and_b32 s{s_tmp}, s{s_tmp}, 7")
    e(f"s_lshl_b32 s{s_T}, s{s_tmp}, 3")
    e(f"s_add_u32 s{s_T}, s{s_T}, s{s_wave}")
    e("s_waitcnt lgkmcnt(0)")
    e(f"s_mov_b32 s{sWS}, s4"); e(f"s_and_b32 s{sWS+1}, s5, 0xffff"); e(f"s_mov_b32 s{sWS+2}, {WS_SIZE}"); e(f"s_mov_b32 s{sWS+3}, 0x20000")
    e(f"s_lshl_b32 s{s_off}, s{s_head}, 7")
    e(f"s_add_u32 s{s_off}, s{s_off}, {WS_KN}")
    e(f"s_load_dwordx16 s[48:63], s[4:5], s{s_off}")
    e(f"s_add_u32 s{s_off}, s{s_off}, 64")
    e(f"s_load_dwordx16 s[64:79], s[4:5], s{s_off}")
    e(f"v_lshlrev_b32 v{v_ak}, 4, v{ln}")
    e(f"s_lshl_b32 s{s_off}, s{s_head}, 16")
    e(f"s_lshl_b32 s{s_tmp}, s{s_T}, 10")
    e(f"s_add_u32 s{s_off}, s{s_off}, s{s_tmp}")
    e(f"s_add_u32 s{s_off}, s{s_off}, {WS_QF}")
    q = T[0]
    e(f"buffer_load_dwordx4 v[{q}:{q+3}], v{v_ak}, s[{sWS}:{sWS+3}], s{s_off} offen")
    e(f"s_lshl_b32 s{s_kvb}, s{s_head}, 17")
    e(f"s_add_u32 s{s_kvb}, s{s_kvb}, {WS_KV}")
    e(f"s_lshl_b32 s{s_tmp2}, s{s_wave}, 10")
    e(f"s_add_u32 s{s_kvb}, s{s_kvb}, s{s_tmp2}")
    for ii in range(16):
        e(f"s_add_u32 m0, s{s_tmp2}, {ii*8192}")
        e(f"s_add_u32 s{s_off}, s{s_kvb}, {ii*8192}")
        e(f"buffer_load_dwordx4 v{v_ak}, s[{sWS}:{sWS+3}], s{s_off} offen lds")
    for i in range(4): e(f"v_mov_b32 v{T[4]+i}, 0x3f803f80")
    e(f"s_lshl_b32 s{s_tmp}, s{s_wave}, 10")
    e(f"s_add_u32 s{s_tmp}, s{s_tmp}, {ONES}")
    e(f"v_add_u32 v{T[8]}, s{s_tmp}, v{v_ak}")
    e(f"ds_write_b128 v{T[8]}, v[{T[4]}:{T[4]+3}]")
    e(f"v_lshrrev_b32 v{T[4]}, 5, v{ln}")
    e(f"v_lshlrev_b32 v{T[4]}, 8, v{T[4]}")
    e(f"v_and_b32 v{T[5]}, 15, v{ln}")
    e(f"v_lshl_add_u32 v{T[4]}, v{T[5]}, 4, v{T[4]}")
    e(f"v_lshrrev_b32 v{T[5]}, 4, v{ln}")
    e(f"v_and_b32 v{T[5]}, 1, v{T[5]}")
    e(f"v_mul_u32_u24 v{T[6]}, {ONES-1024}, v{T[5]}")
    e(f"v_add_u32 v{T[6]}, 1024, v{T[6]}")
    e(f"v_add_u32 v{v_av}, v{T[4]}, v{T[6]}")
    e(f"v_xor_b32 v{T[5]}, 1, v{T[5]}")
    e(f"v_lshlrev_b32 v{v_sv}, 12, v{T[5]}")
    e("s_waitcnt lgkmcnt(0)")
    e(f"s_max_u32 s{s_kmax}, s48, s49")
    for i in range(50, 80):
        e(f"s_max_u32 s{s_kmax}, s{s_kmax}, s{i}")
    e("s_waitcnt vmcnt(16)")
    acc, mx = T[8], T[9]
    e(f"v_mov_b32 v{acc}, 0")
    for i in range(4):
        e(f"v_dot2_f32_bf16 v{acc}, v{q+i}, v{q+i}, v{acc}")
    e("s_nop 2")
    e(f"v_mov_b32 v{T[11]}, v{acc}")
    e("s_nop 1")
    e(f"v_permlane32_swap_b32 v{acc}, v{T[11]}")
    e(f"v_add_f32 v{acc}, v{acc}, v{T[11]}")
    e(f"v_mul_f32 v{acc}, s{s_kmax}, v{acc}")
    e(f"v_sqrt_f32 v{acc}, v{acc}")
    e("s_nop 0")
    e(f"v_mul_f32 v{acc}, {hex(C_SCALE)}, v{acc}")
    for i in range(16):
        e(f"v_sub_f32 v{MB+i}, 0, v{acc}")
    lo, hi, r0, r1 = T[4], T[5], T[6], T[7]
    for i in range(4):
        e(f"v_lshlrev_b32 v{lo}, 16, v{q+i}")
        e(f"v_and_b32 v{hi}, 0xffff0000, v{q+i}")
        e(f"v_mul_f32 v{lo}, {hex(C_SCALE)}, v{lo}")
        e(f"v_mul_f32 v{hi}, {hex(C_SCALE)}, v{hi}")
        e(f"v_cvt_pk_bf16_f32 v{QH+i}, v{lo}, v{hi}")
        e(f"v_lshlrev_b32 v{r0}, 16, v{QH+i}")
        e(f"v_and_b32 v{r1}, 0xffff0000, v{QH+i}")
        e(f"v_sub_f32 v{lo}, v{lo}, v{r0}")
        e(f"v_sub_f32 v{hi}, v{hi}, v{r1}")
        e(f"v_cvt_pk_bf16_f32 v{QL+i}, v{lo}, v{hi}")
    e(f"s_mov_b32 s{s_flag}, 0")
    e("s_waitcnt vmcnt(14) lgkmcnt(0)")
    e("s_barrier")

    if STAMP: e("s_memtime s[42:43]")
    e.label(f"{L}_main")
    for i in range(16): e(f"v_mov_b32 v{OA+i}, 0")
    e(f"v_lshlrev_b32 v{v_ak}, 4, v{ln}")
    e(f"ds_read_b128 v[{KF[0]}:{KF[0]+3}], v{v_ak}")
    e(f"ds_read_b128 v[{KF[1]}:{KF[1]+3}], v{v_ak} offset:2048")
    e(f"ds_read_b128 v[{VF[0][0]}:{VF[0][0]+3}], v{v_av}")
    e(f"ds_read_b128 v[{VF[0][1]}:{VF[0][1]+3}], v{v_av} offset:512")
    e("s_waitcnt lgkmcnt(3)")
    mfma(SA, KF[0], QH, MB)
    mfma(SA, KF[0], QL, SA)
    e("s_nop 7"); e("s_nop 3")
    e(f"s_mov_b32 s{s_cnt}, 0")
    e.label(f"{L}_loop")
    e(f"s_cmp_lg_u32 s{s_cnt}, 3")
    e(f"s_cbranch_scc1 {L}_nosync")
    e("s_waitcnt vmcnt(0)")
    e("s_barrier")
    e.label(f"{L}_nosync")
    for half in range(2):
        X, Y = (SA, SB) if half == 0 else (SB, SA)
        kcur, knext = KF[(half+1) & 1], KF[half & 1]
        vb = half
        toff = half*2048
        def ex(a, b):
            for i in range(a, b): e(f"v_exp_f32 v{X+i}, v{X+i}")
        def cv(a, b):
            for p in range(a, b): e(f"v_cvt_pk_bf16_f32 v{X+p}, v{X+2*p}, v{X+2*p+1}")
        e(f"ds_read_b128 v[{knext}:{knext+3}], v{v_ak} offset:{toff + 2*2048}")
        ex(0, 5)
        e("s_waitcnt lgkmcnt(3)")
        mfma(Y, kcur, QH, MB)
        ex(5, 8)
        cv(0, 4)
        e("s_waitcnt lgkmcnt(1)")
        e("s_nop 0")
        mfma(OA, VF[vb][0], X, OA)
        ex(8, 12)
        mfma(Y, kcur, QL, Y)
        ex(12, 16)
        cv(4, 8)
        e("s_nop 1")
        mfma(OA, VF[vb][1], X+4, OA)
        e(f"ds_read_b128 v[{VF[vb^1][0]}:{VF[vb^1][0]+3}], v{v_av} offset:{toff + 2048}")
        e(f"ds_read_b128 v[{VF[vb^1][1]}:{VF[vb^1][1]+3}], v{v_av} offset:{toff + 2048 + 512}")
    e(f"v_add_u32 v{v_ak}, 4096, v{v_ak}")
    e(f"v_add_u32 v{v_av}, v{v_sv}, v{v_av}")
    e(f"s_add_u32 s{s_cnt}, s{s_cnt}, 1")
    e(f"s_cmp_lt_u32 s{s_cnt}, 32")
    e(f"s_cbranch_scc1 {L}_loop")
    e("s_waitcnt lgkmcnt(0)")
    e("s_nop 15")
    e(f"v_mul_u32_u24 v{T[4]}, 32, v{v_sv}")
    e(f"v_sub_u32 v{v_av}, v{v_av}, v{T[4]}")
    if STAMP: e("s_memtime s[44:45]")
    e(f"s_cmp_lg_u32 s{s_flag}, 0")
    e(f"s_cbranch_scc1 {L}_finish")
    e(f"v_cmp_nge_f32 vcc, 0x21800000, v{OA+8}")
    e("s_nop 3")
    e("s_cmp_eq_u64 vcc, exec")
    e(f"s_cbranch_scc1 {L}_finish")
    e(f"s_mov_b32 s{s_flag}, 1")
    mxr = T[4]
    e(f"v_mov_b32 v{mxr}, 0xff800000")
    e(f"v_lshlrev_b32 v{v_ak}, 4, v{ln}")
    e(f"s_mov_b32 s{s_cnt}, 0")
    e.label(f"{L}_maxloop")
    e(f"ds_read_b128 v[{KF[0]}:{KF[0]+3}], v{v_ak}")
    e("s_waitcnt lgkmcnt(0)")
    mfma(SA, KF[0], QH, "0")
    mfma(SA, KF[0], QL, SA)
    e("s_nop 15")
    e("s_nop 3")
    for i in range(8):
        e(f"v_max3_f32 v{mxr}, v{mxr}, v{SA+2*i}, v{SA+2*i+1}")
    e(f"v_add_u32 v{v_ak}, 2048, v{v_ak}")
    e(f"s_add_u32 s{s_cnt}, s{s_cnt}, 1")
    e(f"s_cmp_lt_u32 s{s_cnt}, 64")
    e(f"s_cbranch_scc1 {L}_maxloop")
    e(f"v_mov_b32 v{T[5]}, v{mxr}")
    e("s_nop 1")
    e(f"v_permlane32_swap_b32 v{mxr}, v{T[5]}")
    e(f"v_max_f32 v{mxr}, v{mxr}, v{T[5]}")
    for i in range(16):
        e(f"v_sub_f32 v{MB+i}, 0, v{mxr}")
    e("s_nop 1")
    e(f"s_branch {L}_main")
    e.label(f"{L}_finish")
    r = T[4]
    e(f"v_rcp_f32 v{r}, v{OA+8}")
    e("s_nop 0")
    for i in range(8):
        e(f"v_mul_f32 v{OA+i}, v{OA+i}, v{r}")
    o = T[8]
    for p in range(4):
        e(f"v_cvt_pk_bf16_f32 v{o+p}, v{OA+2*p}, v{OA+2*p+1}")
    e(f"s_lshl_b32 s{s_off}, s{s_T}, 5")
    e(f"s_add_u32 s{s_off}, s{s_off}, s{s_head}")
    e(f"s_lshl_b32 s{s_off}, s{s_off}, 10")
    e(f"s_add_u32 s{s_off}, s{s_off}, {WS_OF}")
    e(f"v_lshlrev_b32 v{T[5]}, 4, v{ln}")
    e(f"buffer_store_dwordx4 v[{o}:{o+3}], v{T[5]}, s[{sWS}:{sWS+3}], s{s_off} offen")
    e("s_waitcnt vmcnt(0)")
    if STAMP:
        e("s_memtime s[46:47]")
        e("s_waitcnt lgkmcnt(0)")
        e("s_sub_u32 s42, s42, s40"); e("s_sub_u32 s44, s44, s40"); e("s_sub_u32 s46, s46, s40")
        e("v_mov_b32 v4, s42"); e("v_mov_b32 v5, s44"); e("v_mov_b32 v6, s46"); e("v_mov_b32 v7, s40")
        e(f"s_lshl_b32 s48, s2, 3"); e(f"s_add_u32 s48, s48, s{s_wave}"); e("s_lshl_b32 s48, s48, 4"); e(f"s_add_u32 s48, s48, {WS_BO}")
        e("v_mov_b32 v8, 0")
        e("s_mov_b64 exec, 1")
        e(f"buffer_store_dwordx4 v[4:7], v8, s[{sWS}:{sWS+3}], s48 offen")
        e("s_waitcnt vmcnt(0)")
    e.label(f"{L}_end")
    e("s_endpgm")
    return e.text(), NV
```

```python
from layouts import *
from gen_k1 import E
K3_GRID = 256
NBUF3 = 4
K3_LDS = NBUF3*32768
NCH = 18

def gen_k3(name="k3_kernel"):
    e = E(); L = name
    sWS, sOUT, sB2 = 8, 12, 16
    s_wave, s_mb, s_nbw, s_wm, s_wn, s_bA, s_bB, s_off, s_tmp, s_tmp2, s_m0b = 20, 21, 22, 23, 24, 25, 26, 27, 28, 29, 30
    ln = 1
    v_l16 = 2
    RA = [96, 97, 98, 99]; RB = [100, 101, 102, 103]
    AF = [8, 12]; BF = [16, 20]
    ACA, ACB = 32, 48
    B2R = 64
    PK = 72
    T = list(range(80, 96))
    NV = 104
    e(f"s_cmp_ge_u32 s2, {K3_GRID}")
    e(f"s_cbranch_scc1 {L}_end")
    e("s_load_dwordx2 s[4:5], s[0:1], 88")
    e("s_load_dwordx2 s[6:7], s[0:1], 72")
    e("s_load_dwordx2 s[32:33], s[0:1], 56")
    e(f"v_and_b32 v{ln}, 63, v0")
    e("v_lshrrev_b32 v2, 6, v0")
    e("s_nop 0")
    e(f"v_readfirstlane_b32 s{s_wave}, v2")
    e(f"s_and_b32 s{s_mb}, s2, 7")
    e(f"s_lshl_b32 s{s_mb}, s{s_mb}, 2")
    e(f"s_lshr_b32 s{s_nbw}, s2, 3")
    e(f"s_and_b32 s{s_nbw}, s{s_nbw}, 3")
    e(f"s_add_u32 s{s_mb}, s{s_mb}, s{s_nbw}")
    e(f"s_lshr_b32 s{s_nbw}, s2, 5")
    e(f"s_lshr_b32 s{s_wm}, s{s_wave}, 1")
    e(f"s_and_b32 s{s_wn}, s{s_wave}, 1")
    e("s_waitcnt lgkmcnt(0)")
    e(f"s_mov_b32 s{sWS}, s4"); e(f"s_and_b32 s{sWS+1}, s5, 0xffff"); e(f"s_mov_b32 s{sWS+2}, {WS_SIZE}"); e(f"s_mov_b32 s{sWS+3}, 0x20000")
    e(f"s_mov_b32 s{sOUT}, s6"); e(f"s_and_b32 s{sOUT+1}, s7, 0xffff"); e(f"s_mov_b32 s{sOUT+2}, {S*D*2}"); e(f"s_mov_b32 s{sOUT+3}, 0x20000")
    e(f"s_mov_b32 s{sB2}, s32"); e(f"s_and_b32 s{sB2+1}, s33, 0xffff"); e(f"s_mov_b32 s{sB2+2}, 1024"); e(f"s_mov_b32 s{sB2+3}, 0x20000")
    e(f"v_lshlrev_b32 v{v_l16}, 4, v{ln}")
    e(f"s_cmp_lt_u32 s{s_wave}, 2")
    e(f"s_cbranch_scc1 {L}_astream")
    e(f"s_lshl_b32 s{s_tmp}, s{s_nbw}, 1")
    e(f"s_add_u32 s{s_tmp}, s{s_tmp}, s{s_wave}")
    e(f"s_sub_u32 s{s_tmp}, s{s_tmp}, 2")
    e(f"s_mul_i32 s{s_bA}, s{s_tmp}, {32*1024}")
    e(f"s_add_u32 s{s_bA}, s{s_bA}, {WS_WOF}")
    e(f"s_mul_i32 s{s_bB}, s{s_tmp}, {112*1024}")
    e(f"s_add_u32 s{s_bB}, s{s_bB}, {WS_W2F}")
    e(f"s_branch {L}_streamdone")
    e.label(f"{L}_astream")
    e(f"s_lshl_b32 s{s_tmp}, s{s_mb}, 1")
    e(f"s_add_u32 s{s_tmp}, s{s_tmp}, s{s_wave}")
    e(f"s_mul_i32 s{s_bA}, s{s_tmp}, {32*1024}")
    e(f"s_add_u32 s{s_bA}, s{s_bA}, {WS_OF}")
    e(f"s_mul_i32 s{s_bB}, s{s_tmp}, {112*1024}")
    e(f"s_add_u32 s{s_bB}, s{s_bB}, {WS_HF}")
    e.label(f"{L}_streamdone")
    e(f"s_lshl_b32 s{s_m0b}, s{s_wave}, 13")
    def issue(c):
        buf = (c % NBUF3)*32768
        for hh in range(2):
            if c < 4: e(f"s_add_u32 s{s_off}, s{s_bA}, {c*8192 + hh*4096}")
            else:     e(f"s_add_u32 s{s_off}, s{s_bB}, {(c-4)*8192 + hh*4096}")
            e(f"s_add_u32 m0, s{s_m0b}, {buf + hh*4096}")
            e("s_nop 0")
            for i in range(4):
                e(f"buffer_load_dwordx4 v{v_l16}, s[{sWS}:{sWS+3}], s{s_off} offen offset:{i*1024} lds")
    for c in range(3): issue(c)
    e(f"s_lshl_b32 s{s_tmp}, s{s_wm}, 13")
    e(f"v_add_u32 v{RA[0]}, s{s_tmp}, v{v_l16}")
    e(f"s_lshl_b32 s{s_tmp}, s{s_wn}, 13")
    e(f"s_add_u32 s{s_tmp}, s{s_tmp}, 16384")
    e(f"v_add_u32 v{RB[0]}, s{s_tmp}, v{v_l16}")
    for b in range(1, 4):
        e(f"v_add_u32 v{RA[b]}, {b*32768}, v{RA[0]}")
        e(f"v_add_u32 v{RB[b]}, {b*32768}, v{RB[0]}")
    e(f"s_lshl_b32 s{s_tmp}, s{s_mb}, 6")
    e(f"s_lshl_b32 s{s_tmp2}, s{s_wm}, 5")
    e(f"s_add_u32 s{s_tmp}, s{s_tmp}, s{s_tmp2}")
    e(f"v_and_b32 v{T[0]}, 31, v{ln}")
    e(f"v_add_u32 v{T[0]}, s{s_tmp}, v{T[0]}")
    e(f"v_lshlrev_b32 v{T[1]}, 2, v{T[0]}")
    e(f"s_mov_b32 s{s_off}, {WS_G}")
    e(f"buffer_load_dword v{T[2]}, v{T[1]}, s[{sWS}:{sWS+3}], s{s_off} offen")
    e(f"s_lshl_b32 s{s_tmp}, s{s_nbw}, 6")
    e(f"s_lshl_b32 s{s_tmp2}, s{s_wn}, 5")
    e(f"s_add_u32 s{s_tmp}, s{s_tmp}, s{s_tmp2}")
    e(f"s_lshl_b32 s{s_tmp}, s{s_tmp}, 1")
    e(f"v_lshrrev_b32 v{T[3]}, 5, v{ln}")
    e(f"v_lshlrev_b32 v{T[3]}, 3, v{T[3]}")
    for a in range(4):
        e(f"buffer_load_dwordx2 v[{B2R+2*a}:{B2R+2*a+1}], v{T[3]}, s[{sB2}:{sB2+3}], s{s_tmp} offen offset:{a*16}")
    NEXTRA = 5
    for i in range(16):
        e(f"v_mov_b32 v{ACA+i}, 0")
        e(f"v_mov_b32 v{ACB+i}, 0")
    def reads(ks, fb, buf):
        e(f"ds_read_b128 v[{AF[fb]}:{AF[fb]+3}], v{RA[buf]} offset:{ks*1024}")
        e(f"ds_read_b128 v[{BF[fb]}:{BF[fb]+3}], v{RB[buf]} offset:{ks*1024}")
    def vm_after(c):
        n = 8*(min(c+3, NCH) - (c+1))
        if c <= 2: n += NEXTRA
        return n
    e(f"s_waitcnt vmcnt({vm_after(0)})")
    e("s_barrier")
    issue(3)
    reads(0, 0, 0)
    for c in range(NCH):
        buf = c % NBUF3
        acc = ACA if c < 4 else ACB
        for ks in range(8):
            fb = ks & 1
            if ks < 7:
                reads(ks+1, fb ^ 1, buf)
                e("s_waitcnt lgkmcnt(2)")
            else:
                e("s_waitcnt lgkmcnt(0)")
                if c + 1 < NCH:
                    n = 8*(min(c+4, NCH) - (c+2))
                    if c+1 <= 2: n += NEXTRA
                    e(f"s_waitcnt vmcnt({n})")
                    e("s_barrier")
                    if c + 4 < NCH: issue(c+4)
                    reads(0, fb ^ 1, (c+1) % NBUF3)
            e(f"v_mfma_f32_32x32x16_bf16 v[{acc}:{acc+15}], v[{BF[fb]}:{BF[fb]+3}], v[{AF[fb]}:{AF[fb]+3}], v[{acc}:{acc+15}]")
    e("s_nop 15"); e("s_nop 3")
    e("s_waitcnt vmcnt(0)")
    g, omg = T[2], T[4]
    e(f"v_sub_f32 v{omg}, 1.0, v{g}")
    e(f"v_cvt_pk_bf16_f32 v{omg}, v{omg}, v{omg}")
    e(f"v_lshlrev_b32 v{omg}, 16, v{omg}")
    x0, x1, y0, y1, t = T[5], T[6], T[7], T[8], T[9]
    for p in range(8):
        a0, a1 = ACA+2*p, ACA+2*p+1
        b0, b1 = ACB+2*p, ACB+2*p+1
        bq = B2R + p
        e(f"v_cvt_pk_bf16_f32 v{t}, v{a0}, v{a1}")
        e(f"v_lshlrev_b32 v{x0}, 16, v{t}")
        e(f"v_and_b32 v{x1}, 0xffff0000, v{t}")
        e(f"v_cvt_pk_bf16_f32 v{t}, v{b0}, v{b1}")
        e(f"v_lshlrev_b32 v{y0}, 16, v{t}")
        e(f"v_and_b32 v{y1}, 0xffff0000, v{t}")
        e(f"v_lshlrev_b32 v{b0}, 16, v{bq}")
        e(f"v_and_b32 v{b1}, 0xffff0000, v{bq}")
        e(f"v_add_f32 v{y0}, v{y0}, v{b0}")
        e(f"v_add_f32 v{y1}, v{y1}, v{b1}")
        e(f"v_cvt_pk_bf16_f32 v{t}, v{y0}, v{y1}")
        e(f"v_lshlrev_b32 v{y0}, 16, v{t}")
        e(f"v_and_b32 v{y1}, 0xffff0000, v{t}")
        e(f"v_mul_f32 v{x0}, v{g}, v{x0}")
        e(f"v_mul_f32 v{x1}, v{g}, v{x1}")
        e(f"v_cvt_pk_bf16_f32 v{t}, v{x0}, v{x1}")
        e(f"v_lshlrev_b32 v{x0}, 16, v{t}")
        e(f"v_and_b32 v{x1}, 0xffff0000, v{t}")
        e(f"v_mul_f32 v{y0}, v{omg}, v{y0}")
        e(f"v_mul_f32 v{y1}, v{omg}, v{y1}")
        e(f"v_cvt_pk_bf16_f32 v{t}, v{y0}, v{y1}")
        e(f"v_lshlrev_b32 v{y0}, 16, v{t}")
        e(f"v_and_b32 v{y1}, 0xffff0000, v{t}")
        e(f"v_add_f32 v{x0}, v{x0}, v{y0}")
        e(f"v_add_f32 v{x1}, v{x1}, v{y1}")
        e(f"v_cvt_pk_bf16_f32 v{PK+p}, v{x0}, v{x1}")
    e("s_nop 1")
    e(f"v_permlane32_swap_b32 v{PK+0}, v{PK+2}")
    e(f"v_permlane32_swap_b32 v{PK+1}, v{PK+3}")
    e(f"v_permlane32_swap_b32 v{PK+4}, v{PK+6}")
    e(f"v_permlane32_swap_b32 v{PK+5}, v{PK+7}")
    e(f"v_lshlrev_b32 v{T[10]}, 10, v{T[0]}")
    e(f"v_lshrrev_b32 v{T[11]}, 5, v{ln}")
    e(f"v_lshl_add_u32 v{T[10]}, v{T[11]}, 4, v{T[10]}")
    e(f"s_lshl_b32 s{s_tmp}, s{s_nbw}, 7")
    e(f"s_lshl_b32 s{s_tmp2}, s{s_wn}, 6")
    e(f"s_add_u32 s{s_tmp}, s{s_tmp}, s{s_tmp2}")
    e(f"buffer_store_dwordx4 v[{PK}:{PK+3}], v{T[10]}, s[{sOUT}:{sOUT+3}], s{s_tmp} offen")
    e(f"buffer_store_dwordx4 v[{PK+4}:{PK+7}], v{T[10]}, s[{sOUT}:{sOUT+3}], s{s_tmp} offen offset:32")
    e("s_waitcnt vmcnt(0)")
    e.label(f"{L}_end")
    e("s_endpgm")
    return e.text(), NV
```

```python
from layouts import *
from gen_k1 import E

DEBUG = False
STAMP = False
K2_GRID = 256
K2_LDS = 139264
ONES = 131072
C_SCALE = 0x3eb8aa3b


def gen_ffn2(e, L, s_wave):
    sWS, sB2 = 60, 64
    s_T, s_col, s_ao, s_bo, s_tmp, s_tmp2, s_cnt = 68, 69, 70, 71, 72, 73, 74
    ln = 1
    ACC = 32
    AB = [[80, 96], [84, 100], [88, 104], [92, 108]]
    B2R = 112
    PK = 120
    T = list(range(48, 64))
    e.label(f"{L}_gemm")
    e("s_load_dwordx2 s[76:77], s[0:1], 88")
    e("s_load_dwordx2 s[78:79], s[0:1], 56")
    e(f"v_lshlrev_b32 v{T[0]}, 4, v{ln}")
    e("s_waitcnt lgkmcnt(0)")
    e(f"s_mov_b32 s{sWS}, s76"); e(f"s_and_b32 s{sWS+1}, s77, 0xffff"); e(f"s_mov_b32 s{sWS+2}, {WS_SIZE}"); e(f"s_mov_b32 s{sWS+3}, 0x20000")
    e(f"s_mov_b32 s{sB2}, s78"); e(f"s_and_b32 s{sB2+1}, s79, 0xffff"); e(f"s_mov_b32 s{sB2+2}, 1024"); e(f"s_mov_b32 s{sB2+3}, 0x20000")
    e(f"s_lshr_b32 s{s_T}, s2, 2")
    e(f"s_and_b32 s{s_col}, s2, 3")
    e(f"s_lshl_b32 s{s_col}, s{s_col}, 2")
    e(f"s_add_u32 s{s_col}, s{s_col}, s{s_wave}")
    e(f"s_sub_u32 s{s_col}, s{s_col}, 8")
    e(f"s_mul_i32 s{s_ao}, s{s_T}, {112*1024}")
    e(f"s_add_u32 s{s_ao}, s{s_ao}, {WS_HF}")
    e(f"s_mul_i32 s{s_bo}, s{s_col}, {112*1024}")
    e(f"s_add_u32 s{s_bo}, s{s_bo}, {WS_W2F}")
    e(f"s_lshl_b32 s{s_tmp}, s{s_col}, 6")
    e(f"v_lshrrev_b32 v{T[1]}, 5, v{ln}")
    e(f"v_lshlrev_b32 v{T[1]}, 3, v{T[1]}")
    for a in range(4):
        e(f"buffer_load_dwordx2 v[{B2R+2*a}:{B2R+2*a+1}], v{T[1]}, s[{sB2}:{sB2+3}], s{s_tmp} offen offset:{a*16}")
    for i in range(16): e(f"v_mov_b32 v{ACC+i}, 0")
    def pair(j, sa, sb):
        e(f"buffer_load_dwordx4 v[{AB[j][0]}:{AB[j][0]+3}], v{T[0]}, s[{sWS}:{sWS+3}], s{sa} offen offset:{j*1024}")
        e(f"buffer_load_dwordx4 v[{AB[j][1]}:{AB[j][1]+3}], v{T[0]}, s[{sWS}:{sWS+3}], s{sb} offen offset:{j*1024}")
    def mf(j):
        e(f"v_mfma_f32_32x32x16_bf16 v[{ACC}:{ACC+15}], v[{AB[j][1]}:{AB[j][1]+3}], v[{AB[j][0]}:{AB[j][0]+3}], v[{ACC}:{ACC+15}]")
    e("s_barrier")
    for j in range(4): pair(j, s_ao, s_bo)
    e("s_barrier")
    e(f"s_mov_b32 s{s_cnt}, 0")
    e.label(f"{L}_gl")
    e(f"s_add_u32 s{s_tmp}, s{s_ao}, 4096")
    e(f"s_add_u32 s{s_tmp2}, s{s_bo}, 4096")
    for j in range(4):
        e("s_waitcnt vmcnt(6)")
        mf(j)
        pair(j, s_tmp, s_tmp2)
    e(f"s_mov_b32 s{s_ao}, s{s_tmp}")
    e(f"s_mov_b32 s{s_bo}, s{s_tmp2}")
    e(f"s_add_u32 s{s_cnt}, s{s_cnt}, 1")
    e(f"s_cmp_lt_u32 s{s_cnt}, 27")
    e(f"s_cbranch_scc1 {L}_gl")
    for j in range(4):
        e(f"s_waitcnt vmcnt({2*(3-j)})")
        mf(j)
    e("s_nop 15"); e("s_nop 3")
    e(f"v_and_b32 v{T[2]}, 31, v{ln}")
    e(f"s_lshl_b32 s{s_tmp}, s{s_T}, 5")
    e(f"v_add_u32 v{T[2]}, s{s_tmp}, v{T[2]}")
    e(f"v_lshlrev_b32 v{T[3]}, 10, v{T[2]}")
    e(f"v_lshrrev_b32 v{T[4]}, 5, v{ln}")
    e(f"v_lshl_add_u32 v{T[3]}, v{T[4]}, 4, v{T[3]}")
    e(f"s_lshl_b32 s{s_tmp}, s{s_col}, 6")
    e(f"s_add_u32 s{s_tmp}, s{s_tmp}, {WS_BO}")
    t, x0, x1 = T[5], T[6], T[7]
    for p in range(8):
        a0, a1 = ACC+2*p, ACC+2*p+1
        bq = B2R + p
        e(f"v_cvt_pk_bf16_f32 v{t}, v{a0}, v{a1}")
        e(f"v_lshlrev_b32 v{x0}, 16, v{t}")
        e(f"v_and_b32 v{x1}, 0xffff0000, v{t}")
        e(f"v_lshlrev_b32 v{a0}, 16, v{bq}")
        e(f"v_and_b32 v{a1}, 0xffff0000, v{bq}")
        e(f"v_add_f32 v{x0}, v{x0}, v{a0}")
        e(f"v_add_f32 v{x1}, v{x1}, v{a1}")
        e(f"v_cvt_pk_bf16_f32 v{PK+p}, v{x0}, v{x1}")
    e("s_nop 1")
    e(f"v_permlane32_swap_b32 v{PK+0}, v{PK+2}")
    e(f"v_permlane32_swap_b32 v{PK+1}, v{PK+3}")
    e(f"v_permlane32_swap_b32 v{PK+4}, v{PK+6}")
    e(f"v_permlane32_swap_b32 v{PK+5}, v{PK+7}")
    e(f"buffer_store_dwordx4 v[{PK}:{PK+3}], v{T[3]}, s[{sWS}:{sWS+3}], s{s_tmp} offen")
    e(f"buffer_store_dwordx4 v[{PK+4}:{PK+7}], v{T[3]}, s[{sWS}:{sWS+3}], s{s_tmp} offen offset:32")
    e("s_waitcnt vmcnt(0)")
    e("s_endpgm")

def gen_k2(name="k2_kernel"):
    e = E(); L = name
    sWS = 8
    s_wave, s_head, s_T, s_kvb, s_off, s_tmp, s_tmp2, s_cnt, s_flag, s_kmax = 12, 13, 14, 15, 16, 17, 18, 19, 20, 21
    ln = 1
    QH, QL = 4, 8
    MB = 16
    SA, SB = 32, 48
    OA = 64
    KF = [80, 84]
    VF = [[88, 92], [96, 100]]
    v_ak, v_av, v_sv = 2, 3, 12
    T = list(range(104, 120))
    NV = 128
    def mfma(d, a, b, c):
        cs = f"v[{c}:{c+15}]" if isinstance(c, int) else c
        e(f"v_mfma_f32_32x32x16_bf16 v[{d}:{d+15}], v[{a}:{a+3}], v[{b}:{b+3}], {cs}")
    e(f"s_cmp_ge_u32 s2, {K2_GRID}")
    e(f"s_cbranch_scc1 {L}_end")
    if STAMP: e("s_memtime s[40:41]")
    e("s_load_dwordx2 s[4:5], s[0:1], 88")
    e(f"v_and_b32 v{ln}, 63, v0")
    e("v_lshrrev_b32 v2, 6, v0")
    e("s_nop 0")
    e(f"v_readfirstlane_b32 s{s_wave}, v2")
    e(f"s_cmp_ge_u32 s{s_wave}, 8")
    e(f"s_cbranch_scc1 {L}_gemm")
    e(f"s_and_b32 s{s_head}, s2, 7")
    e(f"s_lshl_b32 s{s_head}, s{s_head}, 2")
    e(f"s_lshr_b32 s{s_tmp}, s2, 6")
    e(f"s_add_u32 s{s_head}, s{s_head}, s{s_tmp}")
    e(f"s_lshr_b32 s{s_tmp}, s2, 3")
    e(f"s_and_b32 s{s_tmp}, s{s_tmp}, 7")
    e(f"s_lshl_b32 s{s_T}, s{s_tmp}, 3")
    e(f"s_add_u32 s{s_T}, s{s_T}, s{s_wave}")
    e("s_waitcnt lgkmcnt(0)")
    e(f"s_mov_b32 s{sWS}, s4"); e(f"s_and_b32 s{sWS+1}, s5, 0xffff"); e(f"s_mov_b32 s{sWS+2}, {WS_SIZE}"); e(f"s_mov_b32 s{sWS+3}, 0x20000")
    e(f"s_lshl_b32 s{s_off}, s{s_head}, 7")
    e(f"s_add_u32 s{s_off}, s{s_off}, {WS_KN}")
    e(f"s_load_dwordx16 s[48:63], s[4:5], s{s_off}")
    e(f"s_add_u32 s{s_off}, s{s_off}, 64")
    e(f"s_load_dwordx16 s[64:79], s[4:5], s{s_off}")
    e(f"v_lshlrev_b32 v{v_ak}, 4, v{ln}")
    e(f"s_lshl_b32 s{s_off}, s{s_head}, 16")
    e(f"s_lshl_b32 s{s_tmp}, s{s_T}, 10")
    e(f"s_add_u32 s{s_off}, s{s_off}, s{s_tmp}")
    e(f"s_add_u32 s{s_off}, s{s_off}, {WS_QF}")
    q = T[0]
    e(f"buffer_load_dwordx4 v[{q}:{q+3}], v{v_ak}, s[{sWS}:{sWS+3}], s{s_off} offen")
    e(f"s_lshl_b32 s{s_kvb}, s{s_head}, 17")
    e(f"s_add_u32 s{s_kvb}, s{s_kvb}, {WS_KV}")
    e(f"s_lshl_b32 s{s_tmp2}, s{s_wave}, 10")
    e(f"s_add_u32 s{s_kvb}, s{s_kvb}, s{s_tmp2}")
    for ii in range(16):
        e(f"s_add_u32 m0, s{s_tmp2}, {ii*8192}")
        e(f"s_add_u32 s{s_off}, s{s_kvb}, {ii*8192}")
        e(f"buffer_load_dwordx4 v{v_ak}, s[{sWS}:{sWS+3}], s{s_off} offen lds")
    for i in range(4): e(f"v_mov_b32 v{T[4]+i}, 0x3f803f80")
    e(f"s_lshl_b32 s{s_tmp}, s{s_wave}, 10")
    e(f"s_add_u32 s{s_tmp}, s{s_tmp}, {ONES}")
    e(f"v_add_u32 v{T[8]}, s{s_tmp}, v{v_ak}")
    e(f"ds_write_b128 v{T[8]}, v[{T[4]}:{T[4]+3}]")
    e(f"v_lshrrev_b32 v{T[4]}, 5, v{ln}")
    e(f"v_lshlrev_b32 v{T[4]}, 8, v{T[4]}")
    e(f"v_and_b32 v{T[5]}, 15, v{ln}")
    e(f"v_lshl_add_u32 v{T[4]}, v{T[5]}, 4, v{T[4]}")
    e(f"v_lshrrev_b32 v{T[5]}, 4, v{ln}")
    e(f"v_and_b32 v{T[5]}, 1, v{T[5]}")
    e(f"v_mul_u32_u24 v{T[6]}, {ONES-1024}, v{T[5]}")
    e(f"v_add_u32 v{T[6]}, 1024, v{T[6]}")
    e(f"v_add_u32 v{v_av}, v{T[4]}, v{T[6]}")
    e(f"v_xor_b32 v{T[5]}, 1, v{T[5]}")
    e(f"v_lshlrev_b32 v{v_sv}, 12, v{T[5]}")
    e("s_waitcnt lgkmcnt(0)")
    e(f"s_max_u32 s{s_kmax}, s48, s49")
    for i in range(50, 80):
        e(f"s_max_u32 s{s_kmax}, s{s_kmax}, s{i}")
    e("s_waitcnt vmcnt(16)")
    acc, mx = T[8], T[9]
    e(f"v_mov_b32 v{acc}, 0")
    for i in range(4):
        e(f"v_dot2_f32_bf16 v{acc}, v{q+i}, v{q+i}, v{acc}")
    e("s_nop 2")
    e(f"v_mov_b32 v{T[11]}, v{acc}")
    e("s_nop 1")
    e(f"v_permlane32_swap_b32 v{acc}, v{T[11]}")
    e(f"v_add_f32 v{acc}, v{acc}, v{T[11]}")
    e(f"v_mul_f32 v{acc}, s{s_kmax}, v{acc}")
    e(f"v_sqrt_f32 v{acc}, v{acc}")
    e("s_nop 0")
    e(f"v_mul_f32 v{acc}, {hex(C_SCALE)}, v{acc}")
    for i in range(16):
        e(f"v_sub_f32 v{MB+i}, 0, v{acc}")
    lo, hi, r0, r1 = T[4], T[5], T[6], T[7]
    for i in range(4):
        e(f"v_lshlrev_b32 v{lo}, 16, v{q+i}")
        e(f"v_and_b32 v{hi}, 0xffff0000, v{q+i}")
        e(f"v_mul_f32 v{lo}, {hex(C_SCALE)}, v{lo}")
        e(f"v_mul_f32 v{hi}, {hex(C_SCALE)}, v{hi}")
        e(f"v_cvt_pk_bf16_f32 v{QH+i}, v{lo}, v{hi}")
        e(f"v_lshlrev_b32 v{r0}, 16, v{QH+i}")
        e(f"v_and_b32 v{r1}, 0xffff0000, v{QH+i}")
        e(f"v_sub_f32 v{lo}, v{lo}, v{r0}")
        e(f"v_sub_f32 v{hi}, v{hi}, v{r1}")
        e(f"v_cvt_pk_bf16_f32 v{QL+i}, v{lo}, v{hi}")
    e(f"s_mov_b32 s{s_flag}, 0")
    e("s_waitcnt vmcnt(14) lgkmcnt(0)")
    e("s_barrier")

    if STAMP: e("s_memtime s[42:43]")
    e.label(f"{L}_main")
    for i in range(16): e(f"v_mov_b32 v{OA+i}, 0")
    e(f"v_lshlrev_b32 v{v_ak}, 4, v{ln}")
    e(f"ds_read_b128 v[{KF[0]}:{KF[0]+3}], v{v_ak}")
    e(f"ds_read_b128 v[{KF[1]}:{KF[1]+3}], v{v_ak} offset:2048")
    e(f"ds_read_b128 v[{VF[0][0]}:{VF[0][0]+3}], v{v_av}")
    e(f"ds_read_b128 v[{VF[0][1]}:{VF[0][1]+3}], v{v_av} offset:512")
    e("s_waitcnt lgkmcnt(3)")
    mfma(SA, KF[0], QH, MB)
    mfma(SA, KF[0], QL, SA)
    e("s_nop 7"); e("s_nop 3")
    e(f"s_mov_b32 s{s_cnt}, 0")
    e.label(f"{L}_loop")
    e(f"s_cmp_lg_u32 s{s_cnt}, 3")
    e(f"s_cbranch_scc1 {L}_nosync")
    e(f"s_cmp_lg_u32 s{s_flag}, 0")
    e(f"s_cbranch_scc1 {L}_nosync")
    e("s_waitcnt vmcnt(0)")
    e("s_barrier")
    e.label(f"{L}_nosync")
    for half in range(2):
        X, Y = (SA, SB) if half == 0 else (SB, SA)
        kcur, knext = KF[(half+1) & 1], KF[half & 1]
        vb = half
        toff = half*2048
        def ex(a, b):
            for i in range(a, b): e(f"v_exp_f32 v{X+i}, v{X+i}")
        def cv(a, b):
            for p in range(a, b): e(f"v_cvt_pk_bf16_f32 v{X+p}, v{X+2*p}, v{X+2*p+1}")
        e(f"ds_read_b128 v[{knext}:{knext+3}], v{v_ak} offset:{toff + 2*2048}")
        ex(0, 5)
        e("s_waitcnt lgkmcnt(3)")
        mfma(Y, kcur, QH, MB)
        ex(5, 8)
        cv(0, 4)
        e("s_waitcnt lgkmcnt(1)")
        e("s_nop 0")
        mfma(OA, VF[vb][0], X, OA)
        ex(8, 12)
        mfma(Y, kcur, QL, Y)
        ex(12, 16)
        cv(4, 8)
        e("s_nop 1")
        mfma(OA, VF[vb][1], X+4, OA)
        e(f"ds_read_b128 v[{VF[vb^1][0]}:{VF[vb^1][0]+3}], v{v_av} offset:{toff + 2048}")
        e(f"ds_read_b128 v[{VF[vb^1][1]}:{VF[vb^1][1]+3}], v{v_av} offset:{toff + 2048 + 512}")
    e(f"v_add_u32 v{v_ak}, 4096, v{v_ak}")
    e(f"v_add_u32 v{v_av}, v{v_sv}, v{v_av}")
    e(f"s_add_u32 s{s_cnt}, s{s_cnt}, 1")
    e(f"s_cmp_lt_u32 s{s_cnt}, 32")
    e(f"s_cbranch_scc1 {L}_loop")
    e("s_waitcnt lgkmcnt(0)")
    e("s_nop 15")
    e(f"v_mul_u32_u24 v{T[4]}, 32, v{v_sv}")
    e(f"v_sub_u32 v{v_av}, v{v_av}, v{T[4]}")
    if STAMP: e("s_memtime s[44:45]")
    e(f"s_cmp_lg_u32 s{s_flag}, 0")
    e(f"s_cbranch_scc1 {L}_finish")
    e(f"v_cmp_nge_f32 vcc, 0x21800000, v{OA+8}")
    e("s_nop 3")
    e("s_cmp_eq_u64 vcc, exec")
    e(f"s_cbranch_scc1 {L}_finish")
    e(f"s_mov_b32 s{s_flag}, 1")
    mxr = T[4]
    e(f"v_mov_b32 v{mxr}, 0xff800000")
    e(f"v_lshlrev_b32 v{v_ak}, 4, v{ln}")
    e(f"s_mov_b32 s{s_cnt}, 0")
    e.label(f"{L}_maxloop")
    e(f"ds_read_b128 v[{KF[0]}:{KF[0]+3}], v{v_ak}")
    e("s_waitcnt lgkmcnt(0)")
    mfma(SA, KF[0], QH, "0")
    mfma(SA, KF[0], QL, SA)
    e("s_nop 15")
    e("s_nop 3")
    for i in range(8):
        e(f"v_max3_f32 v{mxr}, v{mxr}, v{SA+2*i}, v{SA+2*i+1}")
    e(f"v_add_u32 v{v_ak}, 2048, v{v_ak}")
    e(f"s_add_u32 s{s_cnt}, s{s_cnt}, 1")
    e(f"s_cmp_lt_u32 s{s_cnt}, 64")
    e(f"s_cbranch_scc1 {L}_maxloop")
    e(f"v_mov_b32 v{T[5]}, v{mxr}")
    e("s_nop 1")
    e(f"v_permlane32_swap_b32 v{mxr}, v{T[5]}")
    e(f"v_max_f32 v{mxr}, v{mxr}, v{T[5]}")
    for i in range(16):
        e(f"v_sub_f32 v{MB+i}, 0, v{mxr}")
    e("s_nop 1")
    e(f"s_branch {L}_main")
    e.label(f"{L}_finish")
    r = T[4]
    e(f"v_rcp_f32 v{r}, v{OA+8}")
    e("s_nop 0")
    for i in range(8):
        e(f"v_mul_f32 v{OA+i}, v{OA+i}, v{r}")
    o = T[8]
    for p in range(4):
        e(f"v_cvt_pk_bf16_f32 v{o+p}, v{OA+2*p}, v{OA+2*p+1}")
    e(f"s_lshl_b32 s{s_off}, s{s_T}, 5")
    e(f"s_add_u32 s{s_off}, s{s_off}, s{s_head}")
    e(f"s_lshl_b32 s{s_off}, s{s_off}, 10")
    e(f"s_add_u32 s{s_off}, s{s_off}, {WS_OF}")
    e(f"v_lshlrev_b32 v{T[5]}, 4, v{ln}")
    e(f"buffer_store_dwordx4 v[{o}:{o+3}], v{T[5]}, s[{sWS}:{sWS+3}], s{s_off} offen")
    e("s_waitcnt vmcnt(0)")
    if STAMP:
        e("s_memtime s[46:47]")
        e("s_waitcnt lgkmcnt(0)")
        e("s_sub_u32 s42, s42, s40"); e("s_sub_u32 s44, s44, s40"); e("s_sub_u32 s46, s46, s40")
        e("v_mov_b32 v4, s42"); e("v_mov_b32 v5, s44"); e("v_mov_b32 v6, s46"); e("v_mov_b32 v7, s40")
        e(f"s_lshl_b32 s48, s2, 3"); e(f"s_add_u32 s48, s48, s{s_wave}"); e("s_lshl_b32 s48, s48, 4"); e(f"s_add_u32 s48, s48, {WS_BO + 0x200000}")
        e("v_mov_b32 v8, 0")
        e("s_mov_b64 exec, 1")
        e(f"buffer_store_dwordx4 v[4:7], v8, s[{sWS}:{sWS+3}], s48 offen")
        e("s_waitcnt vmcnt(0)")
    e.label(f"{L}_end")
    e("s_endpgm")
    gen_ffn2(e, L, s_wave)
    return e.text(), NV
```

```python
from layouts import *
from gen_k1 import E
K3_GRID = 256
NBUF3 = 4
K3_LDS = NBUF3*16384
NCH = 4

def gen_k3(name="k3_kernel"):
    e = E(); L = name
    sWS, sOUT = 8, 12
    s_wave, s_mb, s_nbw, s_wm, s_wn, s_bA, s_off, s_tmp, s_tmp2, s_m0b = 20, 21, 22, 23, 24, 25, 27, 28, 29, 30
    ln = 1
    v_l16 = 2
    RA = [96, 97, 98, 99]; RB = [100, 101, 102, 103]
    AF = [8, 12]; BF = [16, 20]
    ACC = 32
    BOR = 64
    PK = 72
    T = list(range(80, 96))
    NV = 104
    e(f"s_cmp_ge_u32 s2, {K3_GRID}")
    e(f"s_cbranch_scc1 {L}_end")
    e("s_load_dwordx2 s[4:5], s[0:1], 88")
    e("s_load_dwordx2 s[6:7], s[0:1], 72")
    e(f"v_and_b32 v{ln}, 63, v0")
    e("v_lshrrev_b32 v2, 6, v0")
    e("s_nop 0")
    e(f"v_readfirstlane_b32 s{s_wave}, v2")
    e(f"s_and_b32 s{s_mb}, s2, 7")
    e(f"s_lshl_b32 s{s_mb}, s{s_mb}, 2")
    e(f"s_lshr_b32 s{s_nbw}, s2, 3")
    e(f"s_and_b32 s{s_nbw}, s{s_nbw}, 3")
    e(f"s_add_u32 s{s_mb}, s{s_mb}, s{s_nbw}")
    e(f"s_lshr_b32 s{s_nbw}, s2, 5")
    e(f"s_lshr_b32 s{s_wm}, s{s_wave}, 1")
    e(f"s_and_b32 s{s_wn}, s{s_wave}, 1")
    e("s_waitcnt lgkmcnt(0)")
    e(f"s_mov_b32 s{sWS}, s4"); e(f"s_and_b32 s{sWS+1}, s5, 0xffff"); e(f"s_mov_b32 s{sWS+2}, {WS_SIZE}"); e(f"s_mov_b32 s{sWS+3}, 0x20000")
    e(f"s_mov_b32 s{sOUT}, s6"); e(f"s_and_b32 s{sOUT+1}, s7, 0xffff"); e(f"s_mov_b32 s{sOUT+2}, {S*D*2}"); e(f"s_mov_b32 s{sOUT+3}, 0x20000")
    e(f"v_lshlrev_b32 v{v_l16}, 4, v{ln}")
    e(f"s_cmp_lt_u32 s{s_wave}, 2")
    e(f"s_cbranch_scc1 {L}_astream")
    e(f"s_lshl_b32 s{s_tmp}, s{s_nbw}, 1")
    e(f"s_add_u32 s{s_tmp}, s{s_tmp}, s{s_wave}")
    e(f"s_sub_u32 s{s_tmp}, s{s_tmp}, 2")
    e(f"s_mul_i32 s{s_bA}, s{s_tmp}, {32*1024}")
    e(f"s_add_u32 s{s_bA}, s{s_bA}, {WS_WOF}")
    e(f"s_branch {L}_streamdone")
    e.label(f"{L}_astream")
    e(f"s_lshl_b32 s{s_tmp}, s{s_mb}, 1")
    e(f"s_add_u32 s{s_tmp}, s{s_tmp}, s{s_wave}")
    e(f"s_mul_i32 s{s_bA}, s{s_tmp}, {32*1024}")
    e(f"s_add_u32 s{s_bA}, s{s_bA}, {WS_OF}")
    e.label(f"{L}_streamdone")
    e(f"s_lshl_b32 s{s_m0b}, s{s_wave}, 12")
    def issue(c):
        buf = (c % NBUF3)*16384
        e(f"s_add_u32 s{s_off}, s{s_bA}, {c*4096}")
        e(f"s_add_u32 m0, s{s_m0b}, {buf}")
        e("s_nop 0")
        for i in range(4):
            e(f"buffer_load_dwordx4 v{v_l16}, s[{sWS}:{sWS+3}], s{s_off} offen offset:{i*1024} lds")
    for c in range(3): issue(c)
    e(f"s_lshl_b32 s{s_tmp}, s{s_wm}, 12")
    e(f"v_add_u32 v{RA[0]}, s{s_tmp}, v{v_l16}")
    e(f"s_lshl_b32 s{s_tmp}, s{s_wn}, 12")
    e(f"s_add_u32 s{s_tmp}, s{s_tmp}, 8192")
    e(f"v_add_u32 v{RB[0]}, s{s_tmp}, v{v_l16}")
    for b in range(1, 4):
        e(f"v_add_u32 v{RA[b]}, {b*16384}, v{RA[0]}")
        e(f"v_add_u32 v{RB[b]}, {b*16384}, v{RB[0]}")
    for i in range(16): e(f"v_mov_b32 v{ACC+i}, 0")
    e(f"s_lshl_b32 s{s_tmp}, s{s_mb}, 6")
    e(f"s_lshl_b32 s{s_tmp2}, s{s_wm}, 5")
    e(f"s_add_u32 s{s_tmp}, s{s_tmp}, s{s_tmp2}")
    e(f"v_and_b32 v{T[0]}, 31, v{ln}")
    e(f"v_add_u32 v{T[0]}, s{s_tmp}, v{T[0]}")
    e(f"v_lshlrev_b32 v{T[1]}, 2, v{T[0]}")
    e(f"s_mov_b32 s{s_off}, {WS_G}")
    e(f"buffer_load_dword v{T[2]}, v{T[1]}, s[{sWS}:{sWS+3}], s{s_off} offen")
    e(f"v_lshlrev_b32 v{T[3]}, 10, v{T[0]}")
    e(f"v_lshrrev_b32 v{T[4]}, 5, v{ln}")
    e(f"v_lshl_add_u32 v{T[3]}, v{T[4]}, 3, v{T[3]}")
    e(f"s_lshl_b32 s{s_tmp}, s{s_nbw}, 7")
    e(f"s_lshl_b32 s{s_tmp2}, s{s_wn}, 6")
    e(f"s_add_u32 s{s_tmp}, s{s_tmp}, s{s_tmp2}")
    e(f"s_add_u32 s{s_tmp}, s{s_tmp}, {WS_BO}")
    for a in range(4):
        e(f"buffer_load_dwordx2 v[{BOR+2*a}:{BOR+2*a+1}], v{T[3]}, s[{sWS}:{sWS+3}], s{s_tmp} offen offset:{16*a}")
    NEXTRA = 5
    def reads(ks, fb, buf):
        e(f"ds_read_b128 v[{AF[fb]}:{AF[fb]+3}], v{RA[buf]} offset:{ks*1024}")
        e(f"ds_read_b128 v[{BF[fb]}:{BF[fb]+3}], v{RB[buf]} offset:{ks*1024}")
    e(f"s_waitcnt vmcnt({8 + NEXTRA})")
    e("s_barrier")
    issue(3)
    reads(0, 0, 0)
    NHC = 8
    for hc in range(NHC):
        buf = hc % NBUF3
        for ks in range(4):
            fb = ks & 1
            if ks < 3:
                reads(ks+1, fb ^ 1, buf)
                e("s_waitcnt lgkmcnt(2)")
            else:
                e("s_waitcnt lgkmcnt(0)")
                if hc + 1 < NHC:
                    n = 4*(min(hc+4, NHC) - (hc+2))
                    if hc + 1 <= 2: n += NEXTRA
                    e(f"s_waitcnt vmcnt({n})")
                    e("s_barrier")
                    if hc + 4 < NHC: issue(hc+4)
                    reads(0, fb ^ 1, (hc+1) % NBUF3)
                else:
                    e("s_waitcnt vmcnt(0)")
            e(f"v_mfma_f32_32x32x16_bf16 v[{ACC}:{ACC+15}], v[{BF[fb]}:{BF[fb]+3}], v[{AF[fb]}:{AF[fb]+3}], v[{ACC}:{ACC+15}]")
    e("s_nop 15"); e("s_nop 3")
    g = T[2]; omg = T[5]
    e(f"v_sub_f32 v{omg}, 1.0, v{g}")
    e(f"v_cvt_pk_bf16_f32 v{omg}, v{omg}, v{omg}")
    e(f"v_lshlrev_b32 v{omg}, 16, v{omg}")
    x0, x1, y0, y1, t = T[6], T[7], T[8], T[9], T[10]
    for p in range(8):
        a0, a1 = ACC+2*p, ACC+2*p+1
        bq = BOR + p
        e(f"v_cvt_pk_bf16_f32 v{t}, v{a0}, v{a1}")
        e(f"v_lshlrev_b32 v{x0}, 16, v{t}")
        e(f"v_and_b32 v{x1}, 0xffff0000, v{t}")
        e(f"v_mul_f32 v{x0}, v{g}, v{x0}")
        e(f"v_mul_f32 v{x1}, v{g}, v{x1}")
        e(f"v_cvt_pk_bf16_f32 v{t}, v{x0}, v{x1}")
        e(f"v_lshlrev_b32 v{x0}, 16, v{t}")
        e(f"v_and_b32 v{x1}, 0xffff0000, v{t}")
        e(f"v_lshlrev_b32 v{y0}, 16, v{bq}")
        e(f"v_and_b32 v{y1}, 0xffff0000, v{bq}")
        e(f"v_mul_f32 v{y0}, v{omg}, v{y0}")
        e(f"v_mul_f32 v{y1}, v{omg}, v{y1}")
        e(f"v_cvt_pk_bf16_f32 v{t}, v{y0}, v{y1}")
        e(f"v_lshlrev_b32 v{y0}, 16, v{t}")
        e(f"v_and_b32 v{y1}, 0xffff0000, v{t}")
        e(f"v_add_f32 v{x0}, v{x0}, v{y0}")
        e(f"v_add_f32 v{x1}, v{x1}, v{y1}")
        e(f"v_cvt_pk_bf16_f32 v{PK+p}, v{x0}, v{x1}")
    e("s_nop 1")
    e(f"v_permlane32_swap_b32 v{PK+0}, v{PK+2}")
    e(f"v_permlane32_swap_b32 v{PK+1}, v{PK+3}")
    e(f"v_permlane32_swap_b32 v{PK+4}, v{PK+6}")
    e(f"v_permlane32_swap_b32 v{PK+5}, v{PK+7}")
    e(f"v_lshlrev_b32 v{T[11]}, 10, v{T[0]}")
    e(f"v_lshrrev_b32 v{T[12]}, 5, v{ln}")
    e(f"v_lshl_add_u32 v{T[11]}, v{T[12]}, 4, v{T[11]}")
    e(f"s_lshl_b32 s{s_tmp}, s{s_nbw}, 7")
    e(f"s_lshl_b32 s{s_tmp2}, s{s_wn}, 6")
    e(f"s_add_u32 s{s_tmp}, s{s_tmp}, s{s_tmp2}")
    e(f"buffer_store_dwordx4 v[{PK}:{PK+3}], v{T[11]}, s[{sOUT}:{sOUT+3}], s{s_tmp} offen")
    e(f"buffer_store_dwordx4 v[{PK+4}:{PK+7}], v{T[11]}, s[{sOUT}:{sOUT+3}], s{s_tmp} offen offset:32")
    e("s_waitcnt vmcnt(0)")
    e.label(f"{L}_end")
    e("s_endpgm")
    return e.text(), NV
```

```python
from layouts import *

class E:
    def __init__(self): self.l = []
    def __call__(self, s): self.l.append("    " + s)
    def label(self, s): self.l.append(s + ":")
    def raw(self, s): self.l.append(s)
    def text(self): return "\n".join(self.l) + "\n"

STAMP1 = False
NTILE = 208
NAUX = 32
K1_GRID = NTILE + NAUX
K1_LDS = 147456
XB = 16384
WBASE = 49152
WB = 32768


def stamp_end(e, L, tag, s_wave, sWS):
    if not STAMP1: return
    e("s_memtime s[66:67]")
    e("s_waitcnt lgkmcnt(0)")
    e("s_sub_u32 s62, s62, s60"); e("s_sub_u32 s64, s64, s60"); e("s_sub_u32 s66, s66, s60")
    e("s_mov_b64 exec, -1")
    e("s_sub_u32 s70, s70, s60")
    e("v_mov_b32 v4, s62"); e("v_mov_b32 v5, s64"); e("v_mov_b32 v6, s66"); e("v_mov_b32 v7, s70")
    e("s_lshl_b32 s68, s2, 3"); e(f"s_add_u32 s68, s68, s{s_wave}"); e("s_lshl_b32 s68, s68, 4"); e(f"s_add_u32 s68, s68, {WS_BO + 0x200000}")
    e("v_mov_b32 v8, 0")
    e("s_mov_b64 exec, 1")
    e(f"buffer_store_dwordx4 v[4:7], v8, s[{sWS}:{sWS+3}], s68 offen")
    e("s_waitcnt vmcnt(0)")

def gen_aux(e, L, s_wave):
    sX, sWS, sGW, sWT = 8, 16, 12, 20
    s_gw, s_row, s_t, s_fb, s_KS, s_magic, s_nbat, s_dst = 31, 32, 33, 34, 35, 36, 37, 43
    s_a, s_b = 38, 39
    e("s_load_dwordx2 s[46:47], s[0:1], 64")
    e("s_load_dwordx2 s[48:49], s[0:1], 48")
    e("s_load_dwordx2 s[50:51], s[0:1], 16")
    e(f"s_sub_u32 s{s_gw}, s2, {NTILE}")
    e(f"s_lshl_b32 s{s_gw}, s{s_gw}, 3")
    e(f"s_add_u32 s{s_gw}, s{s_gw}, s{s_wave}")
    e(f"s_mov_b32 s{sX}, s4"); e(f"s_and_b32 s{sX+1}, s5, 0xffff"); e(f"s_mov_b32 s{sX+2}, {S*D*2}"); e(f"s_mov_b32 s{sX+3}, 0x20000")
    e(f"s_mov_b32 s{sWS}, s28"); e(f"s_and_b32 s{sWS+1}, s29, 0xffff"); e(f"s_mov_b32 s{sWS+2}, {WS_SIZE}"); e(f"s_mov_b32 s{sWS+3}, 0x20000")
    e("s_waitcnt lgkmcnt(0)")
    e(f"s_mov_b32 s{sGW}, s46"); e(f"s_and_b32 s{sGW+1}, s47, 0xffff"); e(f"s_mov_b32 s{sGW+2}, 1024"); e(f"s_mov_b32 s{sGW+3}, 0x20000")
    e(f"s_cmp_lt_u32 s{s_gw}, 224")
    e(f"s_cbranch_scc1 {L}_aux_w2")
    e(f"s_mov_b32 s{sWT}, s50"); e(f"s_and_b32 s{sWT+1}, s51, 0xffff"); e(f"s_mov_b32 s{sWT+2}, {512*512*2}")
    e(f"s_sub_u32 s{s_fb}, s{s_gw}, 224")
    e(f"s_lshl_b32 s{s_fb}, s{s_fb}, 4")
    e(f"s_mov_b32 s{s_KS}, 32"); e(f"s_mov_b32 s{s_magic}, {1<<27}"); e(f"s_mov_b32 s{s_nbat}, 2"); e(f"s_mov_b32 s{s_dst}, 1792")
    e(f"s_branch {L}_aux_wsel")
    e.label(f"{L}_aux_w2")
    e(f"s_mov_b32 s{sWT}, s48"); e(f"s_and_b32 s{sWT+1}, s49, 0xffff"); e(f"s_mov_b32 s{sWT+2}, {1792*512*2}")
    e(f"s_lshl_b32 s{s_fb}, s{s_gw}, 3")
    e(f"s_mov_b32 s{s_KS}, 112"); e(f"s_mov_b32 s{s_magic}, {(2**32 + 111)//112}"); e(f"s_mov_b32 s{s_nbat}, 1"); e(f"s_mov_b32 s{s_dst}, 0")
    e.label(f"{L}_aux_wsel")
    e(f"s_mov_b32 s{sWT+3}, 0x20000")
    e("v_lshrrev_b32 v2, 5, v1")
    e("v_lshlrev_b32 v2, 12, v2")
    e("v_and_b32 v3, 31, v1")
    e("v_lshl_add_u32 v2, v3, 1, v2")
    e("v_add_u32 v3, 8192, v2")
    e("v_lshlrev_b32 v4, 4, v1")
    FR = 64
    e.label(f"{L}_aux_batch")
    for t in range(8):
        e(f"s_add_u32 s{s_a}, s{s_fb}, {t}")
        e(f"s_mul_hi_u32 s{s_b}, s{s_a}, s{s_magic}")
        e(f"s_mul_i32 s{s_t}, s{s_b}, s{s_KS}")
        e(f"s_sub_u32 s{s_t}, s{s_a}, s{s_t}")
        e(f"s_lshl_b32 s{s_t}, s{s_t}, 14")
        e(f"s_lshl_b32 s{s_b}, s{s_b}, 6")
        e(f"s_add_u32 s{s_t}, s{s_t}, s{s_b}")
        for j in range(8):
            vo = 2 if (j >> 2) == 0 else 3
            d = FR + t*8 + (j & 1)*4 + (j >> 1)
            e(f"buffer_load_ushort v{d}, v{vo}, s[{sWT}:{sWT+3}], s{s_t} offen offset:{(j&3)*1024}")
    e("s_waitcnt vmcnt(0)")
    for t in range(8):
        for p in range(4):
            e(f"v_lshl_or_b32 v{FR+t*8+p}, v{FR+t*8+4+p}, 16, v{FR+t*8+p}")
    for t in range(8):
        e(f"s_add_u32 s{s_a}, s{s_fb}, s{s_dst}")
        e(f"s_add_u32 s{s_a}, s{s_a}, {t}")
        e(f"s_lshl_b32 s{s_a}, s{s_a}, 10")
        e(f"s_add_u32 s{s_a}, s{s_a}, {WS_W2F}")
        e(f"buffer_store_dwordx4 v[{FR+t*8}:{FR+t*8+3}], v4, s[{sWS}:{sWS+3}], s{s_a} offen")
    e(f"s_add_u32 s{s_fb}, s{s_fb}, 8")
    e(f"s_sub_u32 s{s_nbat}, s{s_nbat}, 1")
    e(f"s_cmp_lg_u32 s{s_nbat}, 0")
    e("s_waitcnt vmcnt(0)")
    e(f"s_cbranch_scc1 {L}_aux_batch")
    e(f"buffer_load_dwordx4 v[8:11], v4, s[{sGW}:{sGW+3}], 0 offen")
    e(f"s_lshl_b32 s{s_row}, s{s_gw}, 13")
    e(f"s_add_u32 s{s_a}, s{s_row}, 4096")
    XR = 32
    for r in range(8):
        so = s_row if r < 4 else s_a
        e(f"buffer_load_dwordx4 v[{XR+4*r}:{XR+4*r+3}], v4, s[{sX}:{sX+3}], s{so} offen offset:{(r&3)*1024}")
    e("s_waitcnt vmcnt(0)")
    GL = 12
    for p in range(4):
        e(f"v_lshlrev_b32 v{GL+2*p}, 16, v{8+p}")
        e(f"v_and_b32 v{GL+2*p+1}, 0xffff0000, v{8+p}")
    SUM = 20
    for r in range(8):
        e(f"v_mov_b32 v{SUM+r}, 0")
        for p in range(4):
            x = XR+4*r+p
            e(f"v_lshlrev_b32 v5, 16, v{x}")
            e(f"v_and_b32 v6, 0xffff0000, v{x}")
            e(f"v_mul_f32 v5, v5, v{GL+2*p}")
            e(f"v_mul_f32 v6, v6, v{GL+2*p+1}")
            e(f"v_cvt_pk_bf16_f32 v7, v5, v6")
            e(f"v_lshlrev_b32 v5, 16, v7")
            e(f"v_and_b32 v6, 0xffff0000, v7")
            e(f"v_add_f32 v{SUM+r}, v{SUM+r}, v5")
            e(f"v_add_f32 v{SUM+r}, v{SUM+r}, v6")
    for sw in [0x041F, 0x081F, 0x101F, 0x201F, 0x401F]:
        for r in range(8):
            e(f"ds_swizzle_b32 v{XR+r}, v{SUM+r} offset:{sw}")
        e("s_waitcnt lgkmcnt(0)")
        for r in range(8):
            e(f"v_add_f32 v{SUM+r}, v{SUM+r}, v{XR+r}")
    e("v_mov_b32 v5, 0")
    e("v_mov_b32 v6, 0")
    e("s_nop 1")
    for r in range(8):
        e(f"v_readlane_b32 s{s_a}, v{SUM+r}, 0")
        e(f"v_readlane_b32 s{s_b}, v{SUM+r}, 32")
        e("s_nop 3")
        e(f"v_writelane_b32 v5, s{s_a}, {r}")
        e(f"v_writelane_b32 v6, s{s_b}, {r}")
    e("s_nop 1")
    e("v_add_f32 v5, v5, v6")
    e("v_cvt_pk_bf16_f32 v5, v5, v5")
    e("v_lshlrev_b32 v5, 16, v5")
    e("v_mul_f32 v6, 0xbfb8aa3b, v5")
    e("v_exp_f32 v6, v6")
    e("s_nop 0")
    e("v_add_f32 v6, 1.0, v6")
    e("v_rcp_f32 v6, v6")
    e("s_nop 0")
    e("v_cvt_pk_bf16_f32 v6, v6, v6")
    e("v_lshlrev_b32 v6, 16, v6")
    e(f"s_lshl_b32 s{s_a}, s{s_gw}, 5")
    e(f"s_add_u32 s{s_a}, s{s_a}, {WS_G}")
    e("v_lshlrev_b32 v7, 2, v1")
    e("s_mov_b64 exec, 0xff")
    e(f"buffer_store_dword v6, v7, s[{sWS}:{sWS+3}], s{s_a} offen")
    e("s_waitcnt vmcnt(0)")
    stamp_end(e, L, "aux", s_wave, sWS)
    e("s_endpgm")


def gen_k1(name="k1_kernel"):
    e = E()
    L = name
    sX, sW, sWS, sB1 = 8, 12, 16, 20
    s_wave, s_mb, s_nt, s_rs = 30, 31, 32, 33
    s_xoff, s_woff, s_m0x, s_m0w = 34, 35, 36, 37
    s_tmp, s_tmp2, s_cnt = 38, 39, 40
    v_lane = 1
    v_dx0, v_dx1 = 2, 3
    v_dw = [4, 5, 6, 7]
    v_ax = [8, 9, 10, 11]
    v_aw = [[12, 13], [52, 53], [54, 55]]
    v_t = [14, 15, 16, 17, 18, 19]
    XF = [[20, 24], [28, 32]]
    WF = [[36, 40], [44, 48]]
    ACC = 64
    VB = 128
    def acc(tb, nb): return ACC + (tb*2+nb)*16

    e(f"s_cmp_ge_u32 s2, {K1_GRID}")
    e(f"s_cbranch_scc1 {L}_end")
    if STAMP1: e("s_memtime s[60:61]")
    e("s_load_dwordx2 s[4:5], s[0:1], 0")
    e("s_load_dwordx2 s[6:7], s[0:1], 8")
    e("s_load_dwordx2 s[24:25], s[0:1], 32")
    e("s_load_dwordx2 s[26:27], s[0:1], 40")
    e("s_load_dwordx2 s[28:29], s[0:1], 88")
    e(f"v_and_b32 v{v_lane}, 63, v0")
    e("v_lshrrev_b32 v2, 6, v0")
    e("s_nop 0")
    e(f"v_readfirstlane_b32 s{s_wave}, v2")
    e("s_waitcnt lgkmcnt(0)")
    e(f"s_cmp_ge_u32 s2, {NTILE}")
    e(f"s_cbranch_scc1 {L}_aux")
    e(f"s_and_b32 s{s_tmp}, s2, 7")
    e(f"s_lshr_b32 s{s_tmp2}, s2, 3")
    e(f"s_cmp_lt_u32 s{s_tmp2}, 24")
    e(f"s_cbranch_scc1 {L}_map_main")
    e(f"s_mov_b32 s{s_nt}, 12")
    e(f"s_lshl_b32 s{s_mb}, s{s_tmp}, 1")
    e(f"s_add_u32 s{s_mb}, s{s_mb}, s{s_tmp2}")
    e(f"s_sub_u32 s{s_mb}, s{s_mb}, 24")
    e(f"s_branch {L}_map_done")
    e.label(f"{L}_map_main")
    e(f"s_and_b32 s{s_mb}, s{s_tmp}, 1")
    e(f"s_lshl_b32 s{s_mb}, s{s_mb}, 3")
    e(f"s_and_b32 s{s_nt}, s{s_tmp2}, 7")
    e(f"s_add_u32 s{s_mb}, s{s_mb}, s{s_nt}")
    e(f"s_lshr_b32 s{s_tmp}, s{s_tmp}, 1")
    e(f"s_mul_i32 s{s_tmp}, s{s_tmp}, 3")
    e(f"s_lshr_b32 s{s_nt}, s{s_tmp2}, 3")
    e(f"s_add_u32 s{s_nt}, s{s_nt}, s{s_tmp}")
    e.label(f"{L}_map_done")
    e(f"s_mov_b32 s{sX}, s4"); e(f"s_and_b32 s{sX+1}, s5, 0xffff"); e(f"s_mov_b32 s{sX+2}, {S*D*2}"); e(f"s_mov_b32 s{sX+3}, 0x20000")
    e(f"s_mov_b32 s{sWS}, s28"); e(f"s_and_b32 s{sWS+1}, s29, 0xffff"); e(f"s_mov_b32 s{sWS+2}, {WS_SIZE}"); e(f"s_mov_b32 s{sWS+3}, 0x20000")
    e(f"s_cmp_lt_u32 s{s_nt}, 6")
    e(f"s_cbranch_scc1 {L}_isqkv")
    e(f"s_sub_u32 s{s_tmp}, s{s_nt}, 6")
    e(f"s_lshl_b32 s{s_tmp}, s{s_tmp}, 9")
    e(f"s_add_u32 s{sW}, s24, s{s_tmp}")
    e(f"s_addc_u32 s{sW+1}, s25, 0")
    e(f"s_and_b32 s{sW+1}, s{sW+1}, 0xffff")
    e(f"s_sub_u32 s{sW+2}, {512*3584}, s{s_tmp}")
    e(f"s_mov_b32 s{s_rs}, 3584")
    e(f"s_branch {L}_wsel")
    e.label(f"{L}_isqkv")
    e(f"s_lshl_b32 s{s_tmp}, s{s_nt}, 9")
    e(f"s_add_u32 s{sW}, s6, s{s_tmp}")
    e(f"s_addc_u32 s{sW+1}, s7, 0")
    e(f"s_and_b32 s{sW+1}, s{sW+1}, 0xffff")
    e(f"s_sub_u32 s{sW+2}, {512*3072}, s{s_tmp}")
    e(f"s_mov_b32 s{s_rs}, 3072")
    e.label(f"{L}_wsel")
    e(f"s_mov_b32 s{sW+3}, 0x20000")
    ln = v_lane
    t0, t1, t2, t3, t4, t5 = v_t
    e(f"v_lshrrev_b32 v{t0}, 3, v{ln}")
    e(f"v_lshlrev_b32 v{t0}, 10, v{t0}")
    e(f"v_lshrrev_b32 v{t1}, 4, v{ln}")
    e(f"v_and_b32 v{t2}, 7, v{ln}")
    e(f"v_xor_b32 v{t3}, v{t2}, v{t1}")
    e(f"v_lshl_add_u32 v{v_dx0}, v{t3}, 4, v{t0}")
    e(f"v_add_u32 v{t1}, 4, v{t1}")
    e(f"v_xor_b32 v{t3}, v{t2}, v{t1}")
    e(f"v_lshl_add_u32 v{v_dx1}, v{t3}, 4, v{t0}")
    e(f"v_add_u32 v{v_dx1}, 8192, v{v_dx1}")
    e(f"v_lshrrev_b32 v{t0}, 5, v{ln}")
    e(f"v_mul_lo_u32 v{t1}, v{t0}, s{s_rs}")
    e(f"v_and_b32 v{t2}, 31, v{ln}")
    for jj in range(4):
        e(f"v_add_u32 v{t3}, {(2*jj)&3}, v{t0}")
        e(f"v_lshlrev_b32 v{t3}, 2, v{t3}")
        e(f"v_xor_b32 v{t3}, v{t2}, v{t3}")
        e(f"v_lshl_add_u32 v{v_dw[jj]}, v{t3}, 4, v{t1}")
        if jj:
            e(f"s_mul_i32 s{s_tmp}, s{s_rs}, {2*jj}")
            e(f"v_add_u32 v{v_dw[jj]}, s{s_tmp}, v{v_dw[jj]}")
    e(f"s_lshl_b32 s{s_xoff}, s{s_mb}, 7")
    e(f"s_lshl_b32 s{s_tmp}, s{s_wave}, 4")
    e(f"s_add_u32 s{s_xoff}, s{s_xoff}, s{s_tmp}")
    e(f"s_lshl_b32 s{s_xoff}, s{s_xoff}, 10")
    e(f"s_lshl_b32 s{s_tmp}, s{s_wave}, 3")
    e(f"s_mul_i32 s{s_woff}, s{s_tmp}, s{s_rs}")
    e(f"s_lshl_b32 s{s_m0x}, s{s_wave}, 11")
    e(f"s_lshl_b32 s{s_m0w}, s{s_wave}, 12")
    e(f"s_add_u32 s{s_m0w}, s{s_m0w}, {WBASE}")

    def issue_dma(buf):
        base = buf*XB
        e(f"s_add_u32 m0, s{s_m0x}, {base}")
        e("s_nop 0")
        e(f"buffer_load_dwordx4 v{v_dx0}, s[{sX}:{sX+3}], s{s_xoff} offen lds")
        e(f"s_add_u32 m0, s{s_m0x}, {base+1024}")
        e("s_nop 0")
        e(f"buffer_load_dwordx4 v{v_dx1}, s[{sX}:{sX+3}], s{s_xoff} offen lds")
        base = buf*WB
        for jj in range(4):
            e(f"s_add_u32 m0, s{s_m0w}, {base+jj*1024}")
            e("s_nop 0")
            e(f"buffer_load_dwordx4 v{v_dw[jj]}, s[{sW}:{sW+3}], s{s_woff} offen lds")
        e(f"s_add_u32 s{s_xoff}, s{s_xoff}, 128")
        e(f"s_lshl_b32 s{s_tmp}, s{s_rs}, 6")
        e(f"s_add_u32 s{s_woff}, s{s_woff}, s{s_tmp}")

    if STAMP1: e("s_memtime s[70:71]")
    e(f"s_cmp_lt_u32 s{s_nt}, 6")
    e(f"s_cbranch_scc1 {L}_nobias")
    e(f"s_mov_b32 s{sB1}, s26"); e(f"s_and_b32 s{sB1+1}, s27, 0xffff"); e(f"s_mov_b32 s{sB1+2}, {F*2}"); e(f"s_mov_b32 s{sB1+3}, 0x20000")
    e(f"s_sub_u32 s{s_tmp}, s{s_nt}, 6")
    e(f"s_lshl_b32 s{s_tmp}, s{s_tmp}, 8")
    e(f"s_and_b32 s{s_tmp2}, s{s_wave}, 3")
    e(f"s_lshl_b32 s{s_tmp2}, s{s_tmp2}, 6")
    e(f"s_add_u32 s{s_tmp}, s{s_tmp}, s{s_tmp2}")
    e(f"s_lshl_b32 s{s_tmp}, s{s_tmp}, 1")
    e(f"v_lshrrev_b32 v{t0}, 5, v{ln}")
    e(f"v_lshlrev_b32 v{t0}, 3, v{t0}")
    for nb in range(2):
        for a in range(4):
            e(f"buffer_load_dwordx2 v[{VB+nb*8+a*2}:{VB+nb*8+a*2+1}], v{t0}, s[{sB1}:{sB1+3}], s{s_tmp} offen offset:{nb*64+a*16}")
    e.label(f"{L}_nobias")
    issue_dma(0)
    issue_dma(1)

    wm_expr = None
    s_wm, s_wn = 41, 42
    e(f"s_lshr_b32 s{s_wm}, s{s_wave}, 2")
    e(f"s_and_b32 s{s_wn}, s{s_wave}, 3")
    e(f"v_and_b32 v{t0}, 31, v{ln}")
    e(f"s_lshl_b32 s{s_tmp}, s{s_wm}, 6")
    e(f"v_add_u32 v{t0}, s{s_tmp}, v{t0}")
    e(f"v_lshrrev_b32 v{t1}, 1, v{t0}")
    e(f"v_and_b32 v{t1}, 7, v{t1}")
    e(f"v_lshrrev_b32 v{t2}, 5, v{ln}")
    e(f"v_xor_b32 v{t1}, v{t1}, v{t2}")
    e(f"v_lshlrev_b32 v{t1}, 4, v{t1}")
    e(f"v_lshl_add_u32 v{v_ax[0]}, v{t0}, 7, v{t1}")
    for ks in range(1, 4):
        e(f"v_xor_b32 v{v_ax[ks]}, {ks<<5}, v{v_ax[0]}")
    e(f"v_lshrrev_b32 v{t0}, 2, v{ln}")
    e(f"v_and_b32 v{t0}, 3, v{t0}")
    e(f"v_lshrrev_b32 v{t1}, 5, v{ln}")
    e(f"v_lshl_add_u32 v{t1}, v{t1}, 3, v{t0}")
    e(f"v_lshlrev_b32 v{t1}, 9, v{t1}")
    e(f"v_add_u32 v{t1}, {WBASE}, v{t1}")
    e(f"v_and_b32 v{t2}, 1, v{ln}")
    e(f"v_lshl_add_u32 v{t1}, v{t2}, 3, v{t1}")
    e(f"v_lshrrev_b32 v{t2}, 4, v{ln}")
    e(f"v_and_b32 v{t2}, 1, v{t2}")
    e(f"v_lshlrev_b32 v{t2}, 1, v{t2}")
    e(f"v_lshrrev_b32 v{t3}, 1, v{ln}")
    e(f"v_and_b32 v{t3}, 1, v{t3}")
    e(f"v_add_u32 v{t2}, v{t2}, v{t3}")
    e(f"s_lshl_b32 s{s_tmp}, s{s_wn}, 3")
    e(f"v_add_u32 v{t2}, s{s_tmp}, v{t2}")
    e(f"v_lshlrev_b32 v{t3}, 2, v{t0}")
    for nb in range(2):
        e(f"v_add_u32 v{t4}, {nb*4}, v{t2}")
        e(f"v_xor_b32 v{t4}, v{t4}, v{t3}")
        e(f"v_lshl_add_u32 v{v_aw[0][nb]}, v{t4}, 4, v{t1}")
        e(f"v_add_u32 v{v_aw[1][nb]}, {WB}, v{v_aw[0][nb]}")
        e(f"v_add_u32 v{v_aw[2][nb]}, {2*WB}, v{v_aw[0][nb]}")

    e(f"s_cmp_ge_u32 s{s_nt}, 6")
    e(f"s_cbranch_scc1 {L}_initbias")
    for i in range(64): e(f"v_mov_b32 v{ACC+i}, 0")
    e(f"s_branch {L}_initdone")
    e.label(f"{L}_initbias")
    e("s_waitcnt vmcnt(12)")
    for nb in range(2):
        for a in range(4):
            for dq in range(2):
                src = VB+nb*8+a*2+dq
                for tb in range(2):
                    d = acc(tb, nb) + 4*a + 2*dq
                    e(f"v_lshlrev_b32 v{d}, 16, v{src}")
                    e(f"v_and_b32 v{d+1}, 0xffff0000, v{src}")
    e.label(f"{L}_initdone")
    e(f"s_cmp_eq_u32 s{s_nt}, 4")
    e(f"s_cbranch_scc1 {L}_loopD")
    e(f"s_cmp_eq_u32 s{s_nt}, 5")
    e(f"s_cbranch_scc1 {L}_loopD")

    def reads(ks, fb, buf):
        for tb in range(2):
            e(f"ds_read_b128 v[{XF[fb][tb]}:{XF[fb][tb]+3}], v{v_ax[ks]} offset:{buf*XB + tb*4096}")
        for nb in range(2):
            f = WF[fb][nb]
            e(f"ds_read_b64_tr_b16 v[{f}:{f+1}], v{v_aw[buf][nb]} offset:{ks*8192}")
            e(f"ds_read_b64_tr_b16 v[{f+2}:{f+3}], v{v_aw[buf][nb]} offset:{ks*8192+2048}")

    def main_loop(tag, dprime):
        def mfmas(fb):
            for tb in range(2):
                for nb in range(2):
                    a = acc(tb, nb)
                    xf = XF[fb][tb]; wf = WF[fb][nb]
                    if dprime:
                        e(f"v_mfma_f32_32x32x16_bf16 v[{a}:{a+15}], v[{wf}:{wf+3}], v[{xf}:{xf+3}], v[{a}:{a+15}]")
                    else:
                        e(f"v_mfma_f32_32x32x16_bf16 v[{a}:{a+15}], v[{xf}:{xf+3}], v[{wf}:{wf+3}], v[{a}:{a+15}]")
        e("s_waitcnt vmcnt(6)")
        e("s_barrier")
        if STAMP1: e("s_memtime s[62:63]")
        issue_dma(2)
        reads(0, 0, 0)
        for c in range(8):
            buf = c % 3
            for ks in range(4):
                fb = ks & 1
                if ks < 3:
                    reads(ks+1, fb ^ 1, buf)
                    e("s_waitcnt lgkmcnt(6)")
                    mfmas(fb)
                else:
                    e("s_waitcnt lgkmcnt(0)")
                    if c < 7:
                        e(f"s_waitcnt vmcnt({6 if c < 6 else 0})")
                        e("s_barrier")
                        if c + 3 < 8: issue_dma(buf)
                        reads(0, fb ^ 1, (c+1) % 3)
                    mfmas(fb)
        e("s_nop 15")
        e("s_nop 3")
        if STAMP1: e("s_memtime s[64:65]")

    main_loop("Dp", True)
    e(f"s_cmp_ge_u32 s{s_nt}, 6")
    e(f"s_cbranch_scc1 {L}_epi_ffn")
    e(f"s_and_b32 s{s_tmp}, s{s_nt}, 1")
    e(f"s_lshl_b32 s{s_tmp}, s{s_tmp}, 4")
    e(f"s_lshl_b32 s{s_tmp2}, s{s_wn}, 2")
    e(f"s_add_u32 s{s_tmp}, s{s_tmp}, s{s_tmp2}")
    e(f"s_lshl_b32 s{s_tmp2}, s{s_mb}, 2")
    e(f"s_lshl_b32 s{s_cnt}, s{s_wm}, 1")
    e(f"s_add_u32 s{s_tmp2}, s{s_tmp2}, s{s_cnt}")
    s_hs, s_ts, s_base = 43, 44, 45
    e(f"s_cmp_lt_u32 s{s_nt}, 2")
    e(f"s_cbranch_scc1 {L}_epi_q")
    e(f"s_lshl_b32 s{s_tmp}, s{s_tmp}, 17")
    e(f"s_lshl_b32 s{s_tmp2}, s{s_tmp2}, 11")
    e(f"s_add_u32 s{s_base}, s{s_tmp}, s{s_tmp2}")
    e(f"s_add_u32 s{s_base}, s{s_base}, {WS_KV}")
    e(f"s_mov_b32 s{s_hs}, 131072")
    e(f"s_mov_b32 s{s_ts}, 2048")
    e(f"s_branch {L}_epi_qk_store")
    e.label(f"{L}_epi_q")
    e(f"s_lshl_b32 s{s_tmp}, s{s_tmp}, 16")
    e(f"s_lshl_b32 s{s_tmp2}, s{s_tmp2}, 10")
    e(f"s_add_u32 s{s_base}, s{s_tmp}, s{s_tmp2}")
    e(f"s_add_u32 s{s_base}, s{s_base}, {WS_QF}")
    e(f"s_mov_b32 s{s_hs}, 65536")
    e(f"s_mov_b32 s{s_ts}, 1024")
    e.label(f"{L}_epi_qk_store")
    e(f"v_lshlrev_b32 v{t0}, 4, v{ln}")
    for tb in range(2):
        for nb in range(2):
            for hs in range(2):
                a = acc(tb, nb) + hs*8
                d = VB + ((tb*2+nb)*2+hs)*4
                for p in range(4):
                    e(f"v_cvt_pk_bf16_f32 v{d+p}, v{a+2*p}, v{a+2*p+1}")
                e(f"s_mul_i32 s{s_tmp}, s{s_hs}, {nb*2+hs}")
                e(f"s_add_u32 s{s_tmp}, s{s_tmp}, s{s_base}")
                if tb: e(f"s_add_u32 s{s_tmp}, s{s_tmp}, s{s_ts}")
                e(f"buffer_store_dwordx4 v[{d}:{d+3}], v{t0}, s[{sWS}:{sWS+3}], s{s_tmp} offen")
    e(f"s_cmp_lt_u32 s{s_nt}, 2")
    e(f"s_cbranch_scc1 {L}_epi_qk_done")
    MX = ACC
    tA, tB = ACC+8, ACC+9
    for hh in range(4): e(f"v_mov_b32 v{MX+hh}, 0")
    for tb in range(2):
        for nb in range(2):
            for hs in range(2):
                d = VB + ((tb*2+nb)*2+hs)*4
                e(f"v_mov_b32 v{tA}, 0")
                for p in range(4):
                    e(f"v_dot2_f32_bf16 v{tA}, v{d+p}, v{d+p}, v{tA}")
                e("s_nop 2")
                e(f"v_mov_b32 v{tB}, v{tA}")
                e("s_nop 1")
                e(f"v_permlane32_swap_b32 v{tA}, v{tB}")
                e(f"v_add_f32 v{tA}, v{tA}, v{tB}")
                e(f"v_max_f32 v{MX+nb*2+hs}, v{MX+nb*2+hs}, v{tA}")
    for sw in [0x041F, 0x081F, 0x101F, 0x201F, 0x401F]:
        for hh in range(4):
            e(f"ds_swizzle_b32 v{ACC+12+hh}, v{MX+hh} offset:{sw}")
        e("s_waitcnt lgkmcnt(0)")
        for hh in range(4):
            e(f"v_max_f32 v{MX+hh}, v{MX+hh}, v{ACC+12+hh}")
    e(f"s_and_b32 s{s_tmp}, s{s_nt}, 1")
    e(f"s_lshl_b32 s{s_tmp}, s{s_tmp}, 4")
    e(f"s_lshl_b32 s{s_tmp2}, s{s_wn}, 2")
    e(f"s_add_u32 s{s_tmp}, s{s_tmp}, s{s_tmp2}")
    e(f"s_lshl_b32 s{s_tmp}, s{s_tmp}, 7")
    e(f"s_lshl_b32 s{s_tmp2}, s{s_mb}, 1")
    e(f"s_add_u32 s{s_tmp2}, s{s_tmp2}, s{s_wm}")
    e(f"s_lshl_b32 s{s_tmp2}, s{s_tmp2}, 2")
    e(f"s_add_u32 s{s_tmp}, s{s_tmp}, s{s_tmp2}")
    e(f"s_add_u32 s{s_tmp}, s{s_tmp}, {WS_KN}")
    e(f"v_mov_b32 v{tA}, 0")
    e("s_mov_b64 exec, 1")
    for hh in range(4):
        e(f"buffer_store_dword v{MX+hh}, v{tA}, s[{sWS}:{sWS+3}], s{s_tmp} offen offset:{hh*128}")
    e.label(f"{L}_epi_qk_done")
    e("s_waitcnt vmcnt(0)")
    stamp_end(e, L, "qk", s_wave, sWS)
    e("s_endpgm")

    e.label(f"{L}_epi_ffn")
    e(f"s_sub_u32 s{s_tmp}, s{s_nt}, 6")
    e(f"s_lshl_b32 s{s_tmp}, s{s_tmp}, 4")
    e(f"s_lshl_b32 s{s_tmp2}, s{s_wn}, 2")
    e(f"s_add_u32 s{s_tmp}, s{s_tmp}, s{s_tmp2}")
    e(f"s_lshl_b32 s{s_tmp2}, s{s_mb}, 2")
    e(f"s_lshl_b32 s{s_cnt}, s{s_wm}, 1")
    e(f"s_add_u32 s{s_tmp2}, s{s_tmp2}, s{s_cnt}")
    e(f"s_mul_i32 s{s_tmp2}, s{s_tmp2}, 112")
    e(f"s_add_u32 s{s_tmp}, s{s_tmp}, s{s_tmp2}")
    e(f"s_lshl_b32 s{s_tmp}, s{s_tmp}, 10")
    e(f"s_add_u32 s{s_base}, s{s_tmp}, {WS_HF}")
    e(f"v_lshlrev_b32 v{t0}, 4, v{ln}")
    for tb in range(2):
        for nb in range(2):
            for hs in range(2):
                a = acc(tb, nb) + hs*8
                d = VB + ((tb*2+nb)*2+hs)*4
                for p in range(4):
                    x0, x1 = a+2*p, a+2*p+1
                    e(f"v_cvt_pk_bf16_f32 v{d+p}, v{x0}, v{x1}")
                    e(f"v_lshlrev_b32 v{x0}, 16, v{d+p}")
                    e(f"v_and_b32 v{x1}, 0xffff0000, v{d+p}")
                    e(f"v_max_f32 v{x0}, 0, v{x0}")
                    e(f"v_max_f32 v{x1}, 0, v{x1}")
                    e(f"v_mul_f32 v{x0}, v{x0}, v{x0}")
                    e(f"v_mul_f32 v{x1}, v{x1}, v{x1}")
                    e(f"v_cvt_pk_bf16_f32 v{d+p}, v{x0}, v{x1}")
                off = (nb*2+hs)*1024 + tb*112*1024
                e(f"s_add_u32 s{s_tmp}, s{s_base}, {off}")
                e(f"buffer_store_dwordx4 v[{d}:{d+3}], v{t0}, s[{sWS}:{sWS+3}], s{s_tmp} offen")
    e("s_waitcnt vmcnt(0)")
    stamp_end(e, L, "ffn", s_wave, sWS)
    e("s_endpgm")

    e.label(f"{L}_loopD")
    main_loop("D", False)
    e(f"s_sub_u32 s{s_tmp}, s{s_nt}, 4")
    e(f"s_lshl_b32 s{s_tmp}, s{s_tmp}, 4")
    e(f"s_lshl_b32 s{s_tmp2}, s{s_wn}, 2")
    e(f"s_add_u32 s{s_tmp}, s{s_tmp}, s{s_tmp2}")
    e(f"s_lshl_b32 s{s_tmp}, s{s_tmp}, 17")
    e(f"s_lshl_b32 s{s_tmp2}, s{s_mb}, 2")
    e(f"s_lshl_b32 s{s_cnt}, s{s_wm}, 1")
    e(f"s_add_u32 s{s_tmp2}, s{s_tmp2}, s{s_cnt}")
    e(f"s_lshl_b32 s{s_tmp2}, s{s_tmp2}, 11")
    e(f"s_add_u32 s{s_base}, s{s_tmp}, s{s_tmp2}")
    e(f"s_add_u32 s{s_base}, s{s_base}, {WS_KV+1024}")
    e(f"v_lshrrev_b32 v{t0}, 4, v{ln}")
    e(f"v_and_b32 v{t0}, 1, v{t0}")
    e(f"v_lshlrev_b32 v{t0}, 17, v{t0}")
    e(f"v_lshrrev_b32 v{t1}, 5, v{ln}")
    e(f"v_lshl_add_u32 v{t0}, v{t1}, 8, v{t0}")
    e(f"v_and_b32 v{t1}, 15, v{ln}")
    e(f"v_lshl_add_u32 v{t0}, v{t1}, 4, v{t0}")
    for tb in range(2):
        for nb in range(2):
            for u in range(2):
                a = acc(tb, nb) + u*8
                d = VB + ((tb*2+nb)*2+u)*4
                for p in range(4):
                    e(f"v_cvt_pk_bf16_f32 v{d+p}, v{a+2*p}, v{a+2*p+1}")
                off = nb*2*131072 + tb*2048 + u*512
                e(f"s_add_u32 s{s_tmp}, s{s_base}, {off}")
                e(f"buffer_store_dwordx4 v[{d}:{d+3}], v{t0}, s[{sWS}:{sWS+3}], s{s_tmp} offen")
    e("s_waitcnt vmcnt(0)")
    stamp_end(e, L, "v", s_wave, sWS)
    e("s_endpgm")

    e.label(f"{L}_aux")
    gen_aux(e, L, s_wave)
    e.label(f"{L}_end")
    e("s_endpgm")
    return e.text(), 160

if __name__ == "__main__":
    from asmlib import *
    txt, nv = gen_k1()
    out = HEADER + kernel_begin("k1_kernel") + txt + kernel_descriptor("k1_kernel", nv, 64) + metadata([("k1_kernel", nv, 64, 512)])
    open("k1.s", "w").write(out)
```
